```python
import torch

def _softmax(x, axis=-1):
    return torch.softmax(x, dim=axis)
def _gelu(x):
    return torch.nn.functional.gelu(x, approximate="tanh")
def _silu(x):
    return torch.nn.functional.silu(x)
def _sigmoid(x):
    return torch.sigmoid(x)
def _layernorm(x, axis=-1, eps=1e-5):
    m = x.mean(dim=axis, keepdim=True)
    v = x.var(dim=axis, keepdim=True, unbiased=False)
    return (x - m) / torch.sqrt(v + eps)
def _scatter_add(tgt, idx, src, axis=0):
    return tgt.clone().index_add_(axis, idx, src)
def _segment_sum(src, seg, n):
    out = torch.zeros((n,) + src.shape[1:], dtype=src.dtype)
    return out.index_add_(0, seg, src)
def _pad(x, pw):
    flat = tuple(v for pair in reversed(pw) for v in pair)
    return torch.nn.functional.pad(x, flat)

kernel_name = 'sequential_preLN__softmax_full_mha__glu_gated_glu__prompt'

def setup_inputs():

    _w = (lambda a: (lambda t: t.to(torch.bfloat16) if t.is_floating_point() else t)(torch.as_tensor(a)))
    def _A_setup():
        B, S, D = 1, 2048, 448
        return {
            "x": _w((lambda *s: torch.randn(*s, dtype=torch.bfloat16) * 0.05)(B, S, D)),
            "wqkv": _w((lambda *s: torch.randn(*s, dtype=torch.bfloat16) * 0.05)(D, 3 * D)),
            "wo": _w((lambda *s: torch.randn(*s, dtype=torch.bfloat16) * 0.05)(D, D)),
        }
    _A_in = _A_setup()

    def _B_setup():
        B, S, D, F = 1, 2048, 448, 1792
        return {
            "x": _w((lambda *s: torch.randn(*s, dtype=torch.bfloat16) * 0.05)(B, S, D)),
            "w_gate": _w((lambda *s: torch.randn(*s, dtype=torch.bfloat16) * 0.05)(D, F)),
            "w_up": _w((lambda *s: torch.randn(*s, dtype=torch.bfloat16) * 0.05)(D, F)),
            "w_down": _w((lambda *s: torch.randn(*s, dtype=torch.bfloat16) * 0.05)(F, D)),
        }
    _B_in = _B_setup()

    return {
        "A_x": _A_in["x"],
        "A_wqkv": _A_in["wqkv"],
        "A_wo": _A_in["wo"],
        "B_x": _B_in["x"],
        "B_w_gate": _B_in["w_gate"],
        "B_w_up": _B_in["w_up"],
        "B_w_down": _B_in["w_down"],
    }

def reference(A_x, A_wqkv, A_wo, B_x, B_w_gate, B_w_up, B_w_down):
    def _A_ref(x, wqkv, wo):
        B, S, D = x.shape
        H = 16; Dh = D // H
        qkv = (lambda x, *d: x.permute(*d))((x @ wqkv).reshape(B, S, 3, H, Dh), 2, 0, 3, 1, 4)
        q, k, v = qkv[0], qkv[1], qkv[2]
        scale = Dh ** -0.5
        scores = torch.einsum("bhqd,bhkd->bhqk", q, k) * scale
        p = _softmax(scores, axis=-1)
        o = torch.einsum("bhqk,bhkd->bhqd", p, v)
        return (lambda x, *d: x.permute(*d))(o, 0, 2, 1, 3).reshape(B, S, D) @ wo

    def _B_ref(x, w_gate, w_up, w_down):
        g = torch.einsum("bsd,df->bsf", x, w_gate)
        u = torch.einsum("bsd,df->bsf", x, w_up)
        h = _sigmoid(g) * u
        return torch.einsum("bsf,fd->bsd", h, w_down)

    x = A_x
    h = x + _A_ref(_layernorm(x, axis=-1), A_wqkv, A_wo)
    h2 = h + _B_ref(_layernorm(h, axis=-1), B_w_gate, B_w_up, B_w_down)
    return h2
```

```python
import re, sys

def vr(b, n=1):
    return f"v{b}" if n == 1 else f"v[{b}:{b+n-1}]"
def sr(b, n=1):
    return f"s{b}" if n == 1 else f"s[{b}:{b+n-1}]"

_REG = re.compile(r"^-?\|?([vsa])(\d+)\|?$")
_RNG = re.compile(r"^-?\|?([vsa])\[(\d+):(\d+)\]\|?$")
def regs_of(tok):
    tok = tok.strip()
    m = _REG.match(tok)
    if m: return {(m.group(1), int(m.group(2)))}
    m = _RNG.match(tok)
    if m: return {(m.group(1), i) for i in range(int(m.group(2)), int(m.group(3)) + 1)}
    if tok in ("vcc", "vcc_lo", "vcc_hi"): return {("x", "vcc")}
    if tok in ("exec", "exec_lo", "exec_hi"): return {("x", "exec")}
    if tok == "m0": return {("x", "m0")}
    return set()

TRANS = ("v_exp_", "v_log_", "v_rcp_", "v_rsq_", "v_sqrt_", "v_sin_", "v_cos_")
NODST_S = ("s_cmp", "s_waitcnt", "s_barrier", "s_nop", "s_branch", "s_cbranch", "s_setprio", "s_endpgm",
           "s_sleep", "s_bitcmp", "s_sethalt", "s_setreg")

class Ins:
    __slots__ = ("text", "mn", "ops", "cls", "dst", "src", "A", "B", "C", "passes", "label", "target", "data", "tag", "lds", "flags")
    def __init__(self, text, tag=""):
        self.text = text; self.tag = tag
        self.label = None; self.target = None
        self.dst = set(); self.src = set(); self.A = self.B = self.C = set(); self.data = set()
        self.passes = 0; self.lds = False; self.flags = ""
        t = text.split(";")[0].strip()
        if t.endswith(":"):
            self.cls = "label"; self.label = t[:-1]; self.mn = ""; return
        if t.startswith("."):
            self.cls = "dir"; self.mn = ""; return
        parts = t.split(None, 1)
        mn = self.mn = parts[0]
        rest = parts[1] if len(parts) > 1 else ""
        toks = [x.strip() for x in re.split(r",(?![^\[]*\])", rest)] if rest else []
        if toks:
            last = toks[-1].split()
            self.flags = " ".join(last[1:])
            toks[-1] = last[0] if last else ""
        self.ops = toks
        R = [regs_of(x) for x in toks]
        U = lambda l: set().union(*l) if l else set()
        if mn.startswith("v_mfma") or mn.startswith("v_smfmac"):
            self.cls = "mfma"
            self.dst = R[0]; self.A = R[1]; self.B = R[2]
            if mn.startswith("v_smfmac"):
                self.C = R[0]; self.B = R[2] | R[3]
            else:
                self.C = R[3]
            self.src = self.A | self.B | self.C
            self.passes = 8 if "32x32" in mn else (4 if "16x16" in mn else 2)
        elif mn.startswith("v_"):
            self.cls = "valu"
            if mn.startswith("v_permlane") and "swap" in mn:
                self.dst = R[0] | R[1]; self.src = R[0] | R[1]
            elif mn.startswith("v_nop"):
                pass
            elif "_co_" in mn:
                self.dst = R[0] | R[1]; self.src = U(R[2:])
            else:
                self.dst = R[0]; self.src = U(R[1:])
                if mn.startswith(("v_fmac", "v_dot2c", "v_mac", "v_writelane")) or "dpp" in mn or "sdwa" in mn:
                    self.src |= R[0]
                if mn.startswith("v_cmpx"): self.dst |= {("x", "exec")}
        elif mn.startswith("ds_"):
            self.cls = "ds"
            if mn.startswith("ds_read") or mn.startswith("ds_bpermute") or mn.startswith("ds_permute") or "rtn" in mn:
                self.dst = R[0]; self.src = U(R[1:])
            else:
                self.src = U(R)
        elif mn.startswith("buffer_") or mn.startswith("global_"):
            self.cls = "vmem"
            fl = self.flags.split()
            if "lds" in fl or "_lds_" in mn:
                self.lds = True; self.src = U(R) | {("x", "m0")}
            elif "_load" in mn:
                self.dst = R[0]; self.src = U(R[1:])
            elif "_atomic" in mn:
                self.src = U(R)
                if "sc0" in fl: self.dst = R[0]
            elif "_store" in mn:
                self.src = U(R)
                d = R[0] if mn.startswith("buffer_") else R[1]
                if len(d) >= 3: self.data = d
        elif mn.startswith(("s_load", "s_buffer_load", "s_memtime", "s_memrealtime")):
            self.cls = "smem"; self.dst = R[0]; self.src = U(R[1:])
        elif mn.startswith("s_"):
            self.cls = "salu"
            if mn.startswith(NODST_S):
                self.src = U(R)
                if mn.startswith(("s_branch", "s_cbranch")): self.target = toks[0]
            else:
                self.dst = R[0]; self.src = U(R[1:])
                if "saveexec" in mn: self.dst |= {("x", "exec")}
        else:
            raise ValueError("unknown instr: " + text)
    def states(self):
        if self.cls in ("label", "dir"): return 0
        if self.mn == "s_nop": return int(self.ops[0]) + 1
        return 1

def isvg(rs): return {r for r in rs if r[0] in "va"}
def issg(rs): return {r for r in rs if r[0] == "s" or r == ("x", "vcc")}
EXEC = ("x", "exec")

def need(P, C):
    n = 0
    if P.cls == "valu":
        pv, ps = isvg(P.dst), issg(P.dst)
        if C.cls == "vmem" and ps & C.src: n = max(n, 5)
        if C.cls == "valu":
            if ps & C.src:
                n = max(n, 4 if C.mn.startswith(("v_readlane", "v_writelane")) else 2)
            if "dpp" in C.mn and pv & C.src: n = max(n, 2)
            if C.mn.startswith(("v_readlane", "v_readfirstlane")) and pv & C.src: n = max(n, 1)
            if P.mn.startswith(TRANS) and not C.mn.startswith(TRANS) and pv & C.src: n = max(n, 1)
            if C.mn.startswith("v_permlane") and pv & C.src: n = max(n, 2)
            if ("op_sel" in P.flags and not P.mn.startswith("v_pk") or "sdwa" in P.mn) and pv & (C.src | C.dst): n = max(n, 1)
            if P.mn.startswith("v_dot") and pv & (C.src | C.dst) and P.mn != C.mn: n = max(n, 3)
            if EXEC in P.dst: n = max(n, 5)
        if C.cls == "mfma":
            if pv & C.src: n = max(n, 3 if P.mn.startswith("v_dot") else 2)
            if EXEC in P.dst: n = max(n, 4)
    if P.cls == "salu" and ("x", "m0") in P.dst and (C.lds or "addtid" in C.mn): n = max(n, 1)
    if P.cls == "vmem" and P.data and P.data & C.dst:
        n = max(n, 2 if C.cls in ("valu", "mfma") else 1)
    if P.cls == "mfma":
        i = {2: 0, 4: 1, 8: 2}[P.passes]
        if C.cls == "mfma":
            if P.dst & C.C:
                if P.dst == C.C and P.passes == C.passes: n = max(n, (2, 0, 0)[i])
                else: n = max(n, (4, 6, 10)[i])
            if P.dst & (C.A | C.B): n = max(n, (5, 8, 12)[i])
            if P.dst & C.dst and not (P.dst & C.C) and C.passes < P.passes: n = max(n, (5, 8, 12)[i])
        elif C.cls in ("valu", "vmem", "ds"):
            if P.dst & (C.src | C.dst): n = max(n, (5, 8, 12)[i])
            if C.cls == "valu" and P.C & C.dst: n = max(n, (1, 3, 7)[i])
    return n

class Kernel:
    def __init__(self, name, grid, block, lds, nvgpr=256, nsgpr=100):
        self.name = name; self.grid = grid; self.block = block; self.lds = lds
        self.nvgpr = nvgpr; self.nsgpr = nsgpr
        self.ins = []; self.tag = ""
    def __call__(self, text):
        for t in text.split("\n"):
            t = t.strip()
            if t: self.ins.append(Ins(t, self.tag))
    def L(self, s): return f"{self.name}_{s}"
    def label(self, s): self(self.L(s) + ":")
    def _cfg(self):
        lab = {x.label: i for i, x in enumerate(self.ins) if x.label}
        preds = [[] for _ in self.ins]
        for i, x in enumerate(self.ins):
            if x.target: preds[lab[x.target]].append(i)
            if i + 1 < len(self.ins) and x.mn not in ("s_branch", "s_endpgm"): preds[i + 1].append(i)
        return lab, preds
    def fix_hazards(self, verbose=True):
        i = 0; log = []
        lab, preds = self._cfg()
        while i < len(self.ins):
            C = self.ins[i]
            if C.cls in ("valu", "mfma", "vmem", "ds"):
                deficit = 0; why = None
                stack = [(p, 0) for p in preds[i]]; seen = {}
                while stack:
                    p, d = stack.pop()
                    if d >= 12 or seen.get(p, 99) <= d: continue
                    seen[p] = d
                    P = self.ins[p]
                    n = need(P, C) - d
                    if n > deficit: deficit = n; why = P.text
                    for q in preds[p]: stack.append((q, d + P.states()))
                if deficit > 0:
                    self.ins.insert(i, Ins(f"s_nop {deficit-1}", C.tag))
                    log.append((C.tag, deficit, why, C.text))
                    lab, preds = self._cfg()
                    i += 1
            i += 1
        if verbose:
            for t in log: print(f"  [{self.name}] nop {t[1]} @{t[0]}: {t[2]}  ->  {t[3]}")
        return log
    def check_waits(self):
        lab, _ = self._cfg()
        errs = set(); visits = {}
        stack = [(0, (), ())]
        while stack:
            pc, vm, lg = stack.pop()
            vm = list(vm); lg = list(lg)
            while pc < len(self.ins):
                x = self.ins[pc]
                if x.label:
                    visits[pc] = visits.get(pc, 0) + 1
                    if visits[pc] > 4: break
                if x.mn == "s_waitcnt":
                    m = re.search(r"vmcnt\((\d+)\)", x.text)
                    if m:
                        k = int(m.group(1)); assert k < 64
                        vm = vm[len(vm) - k:] if k < len(vm) and k > 0 else ([] if k == 0 else vm)
                    m = re.search(r"lgkmcnt\((\d+)\)", x.text)
                    if m:
                        k = int(m.group(1)); assert k < 16
                        if k == 0: lg = []
                        elif not any(c == "smem" for c, _ in lg): lg = lg[-k:]
                touched = x.src | x.dst
                for d in vm:
                    if d & touched and not (x.cls == "vmem" and not (d & x.src)): errs.add((pc, "vm", x.text, x.tag))
                for c, d in lg:
                    if d & touched and not (x.cls == "ds" and c == "ds" and not (d & x.src)): errs.add((pc, "lgkm", x.text, x.tag))
                if x.cls == "vmem":
                    vm.append(frozenset(x.dst))
                    if len(vm) > 63: errs.add((pc, "vmcnt overflow", x.text, x.tag))
                if x.cls in ("ds", "smem"): lg.append((x.cls, frozenset(x.dst)))
                if x.mn == "s_endpgm": break
                if x.target:
                    if x.mn == "s_branch": pc = lab[x.target]; continue
                    stack.append((lab[x.target], tuple(vm), tuple(lg)))
                pc += 1
        for e in sorted(errs): print(f"  [{self.name}] WAIT ERROR {e}")
        return not errs
    def check_regs(self):
        mv = max([r[1] for x in self.ins for r in (x.src | x.dst) if r[0] == "v"] + [0])
        ms = max([r[1] for x in self.ins for r in (x.src | x.dst) if r[0] == "s"] + [0])
        assert mv < self.nvgpr, (self.name, mv); assert ms < self.nsgpr, (self.name, ms)
        return mv, ms
    def body(self):
        o = [f".globl {self.name}", ".p2align 8", f".type {self.name},@function", f"{self.name}:"]
        for x in self.ins: o.append(x.text if x.cls == "label" else "    " + x.text)
        return "\n".join(o)
    def desc(self):
        return f""".p2align 6
.amdhsa_kernel {self.name}
  .amdhsa_next_free_vgpr {self.nvgpr}
  .amdhsa_next_free_sgpr {self.nsgpr}
  .amdhsa_accum_offset {min(256, (self.nvgpr + 3) // 4 * 4)}
  .amdhsa_group_segment_fixed_size 0
  .amdhsa_kernarg_size 80
  .amdhsa_user_sgpr_count 2
  .amdhsa_user_sgpr_kernarg_segment_ptr 1
  .amdhsa_system_sgpr_workgroup_id_x 1
.end_amdhsa_kernel"""

def write_file(path, kernels, launches, header="", verbose=True):
    ok = True
    for k in kernels:
        k.fix_hazards(verbose); ok &= k.check_waits()
        mv, ms = k.check_regs()
        if verbose: print(f"{k.name}: {sum(1 for x in k.ins if x.states())} instrs, max v{mv} s{ms}")
    o = [header] if header else []
    for k in launches:
        o.append(f"; @launch kernel={k.name} grid=({k.grid},1,1) block=({k.block},1,1) lds={k.lds}")
    o.append('.amdgcn_target "amdgcn-amd-amdhsa--gfx950"')
    o.append(".text")
    for k in kernels: o.append(k.body())
    o.append('.section .rodata,"a"')
    for k in kernels: o.append(k.desc())
    open(path, "w").write("\n".join(o) + "\n")
    return ok
```

```python
import sys, struct, math
from asmlib import *

S, D, H, DH, F = 2048, 448, 16, 28, 1792
MB = 1 << 20
QF, KV, OF, HF, HH, ST, CS, TS = 0, 2 * MB, 6 * MB, 8 * MB, 10 * MB, 18 * MB, 19 * MB, 20 * MB
WS_SIZE = 21 * MB
OOB = 0x40000000
LOG2E = math.log2(math.e)
def f32(x): return "0x%08x" % struct.unpack("<I", struct.pack("<f", x))[0]

CFG = dict(stamps=False, force_fallback=False, k2_unroll=4, k4_nf=8)

class Vm:
    def __init__(self): self.q = []
    def issue(self, tag, n=1): self.q += [tag] * n
    def cnt(self, *tags):
        last = max(i for i, t in enumerate(self.q) if t in tags)
        return len(self.q) - 1 - last

def MFMA(d, a, b, c=None):
    return f"v_mfma_f32_32x32x16_bf16 {vr(d,16)}, {vr(a,4)}, {vr(b,4)}, {vr(d,16) if c is None else c}"
def SMF(d, a, b, idx):
    return f"v_smfmac_f32_32x32x32_bf16 {vr(d,16)}, {vr(a,4)}, {vr(b,8)}, v{idx}"
def MFMA16(d, a, b, c=None):
    return f"v_mfma_f32_16x16x32_bf16 {vr(d,4)}, {vr(a,4)}, {vr(b,4)}, {vr(d,4) if c is None else c}"
def MFMA4(d, a, b, c=None):
    return f"v_mfma_f32_4x4x4_16b_bf16 {vr(d,4)}, {vr(a,2)}, {vr(b,2)}, {vr(d,4) if c is None else c}"

def prologue(k, nwg, srds):
    k(f"s_cmp_ge_u32 s2, {nwg}")
    k(f"s_cbranch_scc1 {k.L('exit')}")
    for b, off, _ in srds:
        k(f"s_load_dwordx2 {sr(b,2)}, s[0:1], {off}")
    if CFG["stamps"]:
        k("s_memrealtime s[90:91]")
    k("v_readfirstlane_b32 s3, v0")
    k("v_and_b32 v1, 63, v0")
    k("s_and_b32 s6, s2, 7")
    k("s_lshr_b32 s7, s2, 3")
    k("s_lshr_b32 s3, s3, 6")
    for b, _, n in srds:
        k(f"s_mov_b32 s{b+2}, {n}")
        k(f"s_mov_b32 s{b+3}, 0x20000")

def stamp(k, i):
    if CFG["stamps"]: k(f"s_memrealtime s[{90-2*i}:{91-2*i}]")

def finish(k, kid, ws, nst=1):
    if CFG["stamps"]:
        k("s_waitcnt vmcnt(0)")
        k(f"s_memrealtime s[{90-2*nst}:{91-2*nst}]")
        k("s_cmp_lg_u32 s3, 0")
        k(f"s_cbranch_scc1 {k.L('exit')}")
        k("s_waitcnt lgkmcnt(0)")
        k(f"s_lshl_b32 s4, s2, 6")
        k(f"s_add_u32 s4, s4, {TS + kid * 256 * 64}")
        for i in range(nst + 1):
            k(f"v_mov_b32 v2, s{90-2*i}")
            k(f"buffer_store_dword v2, off, {sr(ws,4)}, s4 offset:{4*i}")
    k.label("exit")
    k("s_endpgm")

def hi_mask(k, s):
    k(f"s_mov_b32 s{s}, 0")
    k(f"s_mov_b32 s{s+1}, -1")

def gen_k1():
    k = Kernel("k1_kernel", 256, 256, 155648, nvgpr=168)
    SX, SW, SWS = 8, 12, 16
    XB, RED = 86016, 151552
    prologue(k, 256, [(SX, 0, S * D * 2), (SW, 8, D * 3 * D * 2), (SWS, 72, WS_SIZE)])
    k("s_and_b32 s20, s6, 3\ns_lshl_b32 s20, s20, 2\ns_and_b32 s4, s7, 3\ns_or_b32 s20, s20, s4")
    k("s_lshr_b32 s21, s6, 2\ns_lshl_b32 s21, s21, 3\ns_lshr_b32 s4, s7, 2\ns_or_b32 s21, s21, s4")
    k("s_lshl_b32 s22, s20, 2\ns_add_u32 s22, s22, s3")
    k(f"s_mul_i32 s23, s22, {32*896}")
    k(f"s_mul_i32 s24, s21, 168\ns_and_b32 s24, s24, -16")
    k(f"s_mul_i32 s4, s3, {16*2688}\ns_add_u32 s24, s24, s4")
    k(f"s_lshl_b32 s25, s3, 14\ns_add_u32 s25, s25, {XB}")
    k(f"s_mul_i32 s26, s3, 3072")
    vXs, vWs, vXa, vWa = 4, 8, 12, 64
    k("v_lshrrev_b32 v2, 3, v1\nv_lshrrev_b32 v3, 4, v1\nv_and_b32 v11, 7, v1")
    k("v_mul_u32_u24 v2, 896, v2")
    k("v_xor_b32 v3, v3, v11")
    k(f"v_lshl_add_u32 v{vXs}, v3, 4, v2")
    k("v_xor_b32 v3, 4, v3")
    k(f"v_lshl_add_u32 v{vXs+1}, v3, 4, v2")
    k(f"v_add_u32 v{vXs+2}, {2*(7168-1024)}, v{vXs}")
    k(f"v_add_u32 v{vXs+3}, {3*(7168-1024)}, v{vXs+1}")
    k(f"v_add_u32 v{vXs+1}, {7168-1024}, v{vXs+1}")
    k(f"s_mov_b32 s4, {OOB}")
    for i in range(3):
        k(f"v_add_u32 v2, {64*i}, v1")
        k("v_mul_u32_u24 v3, 0xaaab, v2\nv_lshrrev_b32 v3, 19, v3")
        k("v_mul_u32_u24 v11, 12, v3\nv_sub_u32 v2, v2, v11")
        k("v_mul_u32_u24 v3, 2688, v3")
        k("v_cmp_eq_u32 vcc, 11, v2")
        k("v_lshl_add_u32 v3, v2, 4, v3")
        k(f"v_subrev_u32 v3, {1024*i}, v3")
        k("v_mov_b32 v2, s4")
        k(f"v_cndmask_b32 v{vWs+i}, v3, v2, vcc")
    vm = Vm()
    def dma_x(g):
        o = [f"s_add_u32 m0, s25, {(g%4)*4096}", f"s_add_u32 s4, s23, {g*128}"]
        for i in range(4): o.append(f"buffer_load_dwordx4 v{vXs+i}, {sr(SX,4)}, s4 offen offset:{1024*i} lds")
        vm.issue(("x", g), 4); return o
    def dma_w(g):
        o = [f"s_add_u32 m0, s26, {g*12288}", f"s_add_u32 s5, s24, {g*64*2688}"]
        for i in range(3): o.append(f"buffer_load_dwordx4 v{vWs+i}, {sr(SW,4)}, s5 offen offset:{1024*i} lds")
        vm.issue(("w", g), 3); return o
    k("s_waitcnt lgkmcnt(0)")
    for g in range(4):
        for s in dma_x(g) + dma_w(g): k(s)
    for g in range(4, 7):
        for s in dma_w(g): k(s)
    k("v_and_b32 v2, 31, v1\nv_lshrrev_b32 v3, 5, v1\nv_bfe_u32 v11, v1, 1, 3")
    k("v_xor_b32 v11, v11, v3")
    k("v_lshlrev_b32 v2, 7, v2\nv_add_u32 v2, s25, v2")
    k("v_bfe_u32 v68, v1, 2, 2\nv_lshl_add_u32 v68, v3, 3, v68\nv_mul_u32_u24 v68, 192, v68")
    k("v_bfe_u32 v69, v1, 4, 1\nv_lshl_add_u32 v68, v69, 5, v68")
    k("v_and_b32 v69, 3, v1\nv_lshl_add_u32 v68, v69, 3, v68")
    k("s_and_b32 s4, s21, 1\ns_lshl_b32 s4, s4, 3")
    k("v_add_u32 v68, s4, v68")
    for p in range(4):
        k(f"s_add_u32 s4, s3, {p}\ns_and_b32 s4, s4, 3\ns_lshl_b32 s5, s4, 1\ns_mul_i32 s4, s4, 3072")
        k("v_xor_b32 v69, s5, v11")
        k(f"v_lshl_add_u32 v{vXa+p}, v69, 4, v2")
        k(f"v_add_u32 v{vWa+p}, s4, v68")
    ACC, XF, WF = 16, 72, 80
    SQ, RS, CSA, SEL = 104, 112, 116, 128
    AUGA, AUGB = 132, 140
    k("v_lshrrev_b32 v2, 2, v1\nv_xor_b32 v2, v2, v1\nv_and_b32 v2, 4, v2")
    k("v_cmp_eq_u32 vcc, 0, v2")
    k("v_mov_b32 v2, 0x3f803f80")
    k(f"v_cndmask_b32 v{SEL}, 0, v2, vcc")
    for i in range(1, 4): k(f"v_mov_b32 v{SEL+i}, v{SEL}")
    for r in (AUGA + 1, AUGA + 3, AUGA + 5, AUGA + 6, AUGA + 7, AUGB + 1, AUGB + 2, AUGB + 3): k(f"v_mov_b32 v{r}, 0")
    hi_mask(k, 30)
    for i, m in enumerate((0x22222222, 0x44444444, 0x88888888)):
        k(f"s_mov_b32 s{32+2*i}, {hex(m)}\ns_mov_b32 s{33+2*i}, {hex(m)}")
    k(f"v_lshlrev_b32 v70, 2, v1\nv_add_u32 v70, {RED}, v70")
    k("s_mul_i32 s4, s3, 768\nv_add_u32 v71, s4, v70")
    def reads(n):
        g, p = divmod(n, 4); b = n & 1
        go = (g - 4 if g >= 4 else g) * 12288
        o = [f"ds_read_b128 {vr(XF+4*b,4)}, v{vXa+p} offset:{(g%4)*4096}"]
        for u in range(3):
            for h in range(2):
                o.append(f"ds_read_b64_tr_b16 {vr(WF+12*b+4*u+2*h,2)}, v{vWa+p} offset:{go+h*768+56*u}")
        return o
    k.tag = "k1main"
    k(f"s_waitcnt vmcnt({vm.cnt(('x',0),('w',0))})")
    k("s_barrier")
    stamp(k, 1)
    for s in reads(0): k(s)
    for n in range(28):
        g, p = divmod(n, 4); b = n & 1
        x, w = XF + 4 * b, WF + 12 * b
        z = "0" if n == 0 else None
        big = [MFMA(ACC + 16 * u, w + 4 * u, x, z) for u in range(3)]
        small = [MFMA16(RS, SEL, x, z), MFMA4(SQ, x, x, z), MFMA4(SQ + 4, x + 2, x + 2, z)]
        if p == 0: small += [MFMA16(CSA + 4 * u, SEL, w + 4 * u, z) for u in range(3)]
        seq = small + big if n == 27 else big[:1] + small[:2] + big[1:2] + small[2:] + big[2:]
        fill = []
        if n < 27:
            if p == 3:
                fill.append([f"s_waitcnt vmcnt({vm.cnt(('x',g+1),('w',g+1))})", "s_barrier"])
            r = reads(n + 1)
            if 15 <= n <= 18: r.insert(0, f"v_add_u32 v{vWa+(n+1)%4}, 49152, v{vWa+(n+1)%4}")
            fill += [r[:3], r[3:5], r[5:]]
        if p == 0 and 1 <= g <= 3: fill.append(dma_x(g + 3))
        if n == 25: fill.append([f"ds_write_b32 v71, v{CSA+4*u} offset:{256*u}" for u in range(3)])
        if n == 26: fill.insert(0, ["s_barrier"])
        if n == 26: fill.append([f"ds_read_b32 v{144+4*u+i}, v70 offset:{768*i+256*u}" for u in range(3) for i in range(4)])
        k("s_waitcnt lgkmcnt(0)")
        for i, s in enumerate(seq):
            k(s)
            if i < len(fill):
                for t in fill[i]: k(t)
            if n == 27 and i >= 2:
                u = i - 2
                if u < 3:
                    c = 144 + 4 * u
                    k(f"v_add_f32 v{c}, v{c}, v{c+1}\nv_add_f32 v{c+2}, v{c+2}, v{c+3}\nv_add_f32 v{c}, v{c}, v{c+2}")
                    k(f"v_cvt_pk_bf16_f32 v{c+1}, v{c}, v{c}\nv_and_b32 v{c+2}, 0xffff0000, v{c+1}\nv_sub_f32 v{c}, v{c}, v{c+2}")
                    k(f"v_cvt_pk_bf16_f32 v{c}, v{c}, v{c}")
                    k(f"v_cndmask_b32 v{AUGA+2*u}, v{c+1}, v{c}, s[30:31]")
        assert len(fill) <= len(seq)
    k.tag = "k1epi"
    k(f"v_mul_f32 v2, {f32(-1.0/D)}, v{RS}")
    k("v_cvt_pk_bf16_f32 v3, v2, v2\nv_and_b32 v3, 0xffff0000, v3\nv_sub_f32 v3, v2, v3")
    k(f"v_cvt_pk_bf16_f32 v{AUGB}, v2, v3")
    for i in range(2): k(f"v_add_f32 v{SQ+i}, v{SQ+i}, v{SQ+4+i}")
    k(MFMA(ACC, AUGA, AUGB))
    for i in range(2, 4): k(f"v_add_f32 v{SQ+i}, v{SQ+i}, v{SQ+4+i}")
    for i in range(3): k(f"v_cndmask_b32 v{SQ}, v{SQ}, v{SQ+1+i}, s[{32+2*i}:{33+2*i}]")
    k(f"v_mov_b32 v3, v{SQ}")
    k(MFMA(ACC + 16, AUGA + 2, AUGB))
    k("v_mul_f32 v2, v2, v2")
    k(f"v_permlane32_swap_b32 v3, v{SQ}")
    k(f"v_add_f32 v3, v3, v{SQ}")
    k(f"v_mov_b32 v11, {f32(1.0/D)}")
    k("v_fma_f32 v3, v3, v11, -v2")
    k("v_max_f32 v3, 0, v3")
    k(MFMA(ACC + 32, AUGA + 4, AUGB))
    k(f"v_add_f32 v3, {f32(1e-5)}, v3")
    k("v_rsq_f32 v3, v3")
    k("v_lshlrev_b32 v12, 4, v1")
    k("v_and_b32 v13, 31, v1\nv_lshlrev_b32 v13, 6, v13\nv_and_b32 v14, 32, v1\nv_add3_u32 v13, v13, v14, s25")
    k("v_bfe_u32 v14, v1, 2, 2\nv_lshrrev_b32 v15, 5, v1\nv_lshl_add_u32 v14, v15, 3, v14\nv_lshlrev_b32 v14, 6, v14")
    k("v_and_b32 v15, 1, v1\nv_lshl_add_u32 v14, v15, 5, v14")
    k("v_bfe_u32 v15, v1, 1, 1\nv_lshl_add_u32 v14, v15, 3, v14")
    k("v_and_b32 v15, 16, v1\nv_add3_u32 v14, v14, v15, s25")
    k("s_mul_i32 s27, s21, 3")
    for u in range(3):
        a = ACC + 16 * u; pk = 72 + 8 * u
        k(f"s_add_u32 s4, s27, {u}\ns_lshr_b32 s5, s4, 4\ns_and_b32 s4, s4, 15")
        k("s_lshl_b32 s4, s4, 6\ns_add_u32 s4, s4, s22")
        k(f"s_lshl_b32 s28, s4, 11\ns_lshl_b32 s29, s4, 12\ns_add_u32 s29, s29, {KV}")
        k("s_cmp_eq_u32 s5, 0")
        k(f"s_cselect_b32 s28, s28, s29")
        k(f"s_cselect_b32 s38, {f32(DH ** -0.5 * LOG2E)}, 1.0")
        k(f"s_cselect_b32 s39, 0, 0x3f80")
        k("v_mul_f32 v4, s38, v3")
        k("v_mov_b32 v6, s39")
        for i in range(8):
            k(f"v_pk_mul_f32 {vr(a+2*i,2)}, {vr(a+2*i,2)}, v[4:5] op_sel_hi:[1,0]")
        for i in range(8):
            k(f"v_cvt_pk_bf16_f32 v{pk+i}, v{a+2*i}, v{a+2*i+1}")
        k(f"v_cndmask_b32 v{pk+6}, v{pk+6}, v6, s[30:31]")
        k(f"v_cndmask_b32 v{pk+7}, v{pk+7}, 0, s[30:31]")
        k("s_cmp_eq_u32 s5, 2")
        k(f"s_cbranch_scc0 {k.L(f'st{u}')}")
        k(f"ds_write_b128 v13, {vr(pk,4)} offset:{2048*u}")
        k(f"ds_write_b128 v13, {vr(pk+4,4)} offset:{2048*u+16}")
        k("s_add_u32 s28, s28, 2048")
        k("s_waitcnt lgkmcnt(0)")
        for s in range(2):
            for h in range(2):
                k(f"ds_read_b64_tr_b16 {vr(pk+4*s+2*h,2)}, v14 offset:{2048*u+1024*s+256*h}")
        k("s_waitcnt lgkmcnt(0)")
        k.label(f"st{u}")
        k(f"buffer_store_dwordx4 {vr(pk,4)}, v12, {sr(SWS,4)}, s28 offen")
        k(f"buffer_store_dwordx4 {vr(pk+4,4)}, v12, {sr(SWS,4)}, s28 offen offset:1024")
    finish(k, 0, SWS, 2)
    return k

def gen_k2():
    k = Kernel("k2_kernel", 256, 256, 16384, nvgpr=200)
    SWS = 8
    prologue(k, 256, [(SWS, 72, WS_SIZE)])
    k("s_lshl_b32 s20, s6, 1\ns_and_b32 s4, s7, 1\ns_or_b32 s20, s20, s4")
    k("s_lshr_b32 s21, s7, 1")
    k("s_and_b32 s4, s3, 1\ns_lshr_b32 s5, s3, 1")
    k("s_lshl_b32 s22, s21, 2\ns_lshl_b32 s4, s4, 1\ns_add_u32 s22, s22, s4\ns_add_u32 s22, s22, s5")
    k("s_lshl_b32 s23, s20, 6")
    k("s_add_u32 s24, s23, s22\ns_lshl_b32 s24, s24, 11")
    k("s_xor_b32 s25, s24, 2048")
    k(f"s_lshl_b32 s26, s23, 12\ns_add_u32 s26, s26, {KV}")
    k("s_lshl_b32 s5, s5, 17\ns_add_u32 s27, s26, s5")
    k("v_lshlrev_b32 v2, 4, v1")
    SB, O, Q, KVB, K0, IDX = 16, 80, 112, 128, 192, 3
    def ld(dst, soff, off): return f"buffer_load_dwordx4 {vr(dst,4)}, v2, {sr(SWS,4)}, s{soff} offen offset:{off}"
    k("s_waitcnt lgkmcnt(0)")
    k(ld(K0, 26, 0)); k(ld(K0 + 4, 26, 1024))
    k(ld(Q, 24, 0)); k(ld(Q + 4, 24, 1024)); k(ld(Q + 8, 25, 0)); k(ld(Q + 12, 25, 1024))
    for t in range(3):
        for i in range(4): k(ld(KVB + 16 * t + 4 * i, 27, 1024 * i))
        k("s_add_u32 s27, s27, 4096")
    k(f"v_mov_b32 v{IDX}, 0xdddd")
    for r in list(range(O, O + 32)) + list(range(SB + 56, SB + 64)) + list(range(KVB + 60, KVB + 64)): k(f"v_mov_b32 v{r}, 0")
    hi_mask(k, 30)
    k("s_waitcnt vmcnt(14)")
    k(MFMA(SB, K0, Q, "0")); k(MFMA(SB, K0 + 4, Q + 4))
    k("s_waitcnt vmcnt(12)")
    k(MFMA(SB + 16, K0, Q + 8, "0")); k(MFMA(SB + 16, K0 + 4, Q + 12))
    def rowmax(s, t):
        k(f"v_max3_f32 v{t}, v{s}, v{s+1}, v{s+2}")
        for i in range(3, 15, 2): k(f"v_max3_f32 v{t}, v{t}, v{s+i}, v{s+i+1}")
        k(f"v_max_f32 v{t}, v{t}, v{s+15}")
    for q in range(2):
        rowmax(SB + 16 * q, 4)
        k("v_mov_b32 v5, v4")
        k("v_permlane32_swap_b32 v4, v5")
        k("v_max_f32 v4, v4, v5")
        k("v_cvt_pk_bf16_f32 v4, -v4, 0")
        k(f"v_cndmask_b32 v{Q+8*q+6}, v{Q+8*q+6}, v4, s[30:31]")
        if q == 0:
            k("s_waitcnt vmcnt(8)")
            k(MFMA(SB, KVB, Q, "0")); k(MFMA(SB, KVB + 4, Q + 4))
    stamp(k, 1)
    U = CFG["k2_unroll"]
    k(f"s_mov_b32 s28, {32 // U}")
    k.tag = "k2main"
    k(".p2align 3")
    k.label("loop")
    for t in range(U):
        kb, kp, kn = KVB + 16 * (t % 4), KVB + 16 * ((t - 1) % 4), KVB + 16 * ((t + 1) % 4)
        for q in range(2):
            n = 2 * t + q
            cur, nxt, prv = SB + 16 * (n % 4), SB + 16 * ((n + 1) % 4), SB + 16 * ((n - 1) % 4)
            kq = kb if q == 0 else kn
            e = lambda a, b: [k(f"v_exp_f32 v{cur+i}, v{cur+i}") for i in range(a, b)]
            k(MFMA(nxt, kq, Q + 8 * (1 - q), "0"))
            if q == 0: k(ld(kp, 27, 0))
            else: k(ld(kp + 8, 27, 2048))
            e(0, 3)
            k(MFMA(nxt, kq + 4, Q + 8 * (1 - q) + 4))
            if q == 0: k(ld(kp + 4, 27, 1024))
            else: k(ld(kp + 12, 27, 3072))
            e(3, 6)
            k(SMF(O + 16 * (1 - q), (kp if q == 0 else kb) + 12, prv + 8, IDX))
            if q == 1: k("s_add_u32 s27, s27, 4096")
            elif t == U - 1 and U < 32: k("s_sub_u32 s28, s28, 1")
            e(6, 10)
            k(SMF(O + 16 * q, kb + 8, cur, IDX))
            if q == 0: k("s_waitcnt vmcnt(6)")
            elif t == U - 1 and U < 32: k("s_cmp_lg_u32 s28, 0")
            e(10, 16)
    if U < 32: k(f"s_cbranch_scc1 {k.L('loop')}")
    k.tag = "k2epi"
    k("s_lshl_b32 s4, s3, 12")
    k("v_add_u32 v4, s4, v2")
    k(SMF(O + 16, KVB + 60, SB + 56, IDX))
    k("v_xor_b32 v5, 8192, v4")
    k(f"s_lshl_b32 s24, s22, 15\ns_lshl_b32 s4, s20, 11\ns_add_u32 s24, s24, s4\ns_add_u32 s24, s24, {OF}")
    k(f"s_mov_b32 s4, {f32(2.0**-40)}\ns_mov_b32 s5, {f32(2.0**40)}")
    for i in range(4): k(f"ds_write_b128 v4, {vr(O+16+4*i,4)} offset:{1024*i}")
    k("s_waitcnt lgkmcnt(0)")
    k("s_barrier")
    for i in (3, 0, 1, 2): k(f"ds_read_b128 {vr(O+16+4*i,4)}, v5 offset:{1024*i}")
    k("s_waitcnt lgkmcnt(3)")
    for i in (6, 7): k(f"v_pk_add_f32 {vr(O+2*i,2)}, {vr(O+2*i,2)}, {vr(O+16+2*i,2)}")
    k(f"v_mov_b32 v6, v{O+12}\nv_mov_b32 v7, v{O+12}")
    k("s_waitcnt lgkmcnt(0)")
    for i in range(2): k(f"v_pk_add_f32 {vr(O+2*i,2)}, {vr(O+2*i,2)}, {vr(O+16+2*i,2)}")
    k("v_permlane32_swap_b32 v7, v6")
    k("v_cmp_le_f32 vcc, s4, v6")
    k("v_cmp_ge_f32 s[32:33], s5, v6")
    for i in range(2, 6): k(f"v_pk_add_f32 {vr(O+2*i,2)}, {vr(O+2*i,2)}, {vr(O+16+2*i,2)}")
    k("s_and_b64 s[32:33], s[32:33], vcc")
    k("s_cmp_eq_u64 s[32:33], -1")
    k(f"s_cbranch_scc{1 if CFG['force_fallback'] else 0} {k.L('fb')}")
    k.label("norm")
    k("v_rcp_f32 v6, v6")
    for i in range(8): k(f"v_pk_mul_f32 {vr(O+2*i,2)}, {vr(O+2*i,2)}, v[6:7] op_sel_hi:[1,0]")
    for i in range(8): k(f"v_cvt_pk_bf16_f32 v{8+i}, v{O+2*i}, v{O+2*i+1}")
    k("v_cndmask_b32 v14, v14, 0, s[30:31]\nv_cndmask_b32 v15, v15, 0, s[30:31]")
    k(f"buffer_store_dwordx4 v[8:11], v2, {sr(SWS,4)}, s24 offen")
    k(f"buffer_store_dwordx4 v[12:15], v2, {sr(SWS,4)}, s24 offen offset:1024")
    finish(k, 1, SWS, 2)
    k.tag = "k2fb"
    k.label("fb")
    k("s_waitcnt vmcnt(0)")
    k(f"v_cndmask_b32 v{Q+6}, v{Q+6}, 0, s[30:31]")
    k("v_mov_b32 v8, 0xff800000")
    k("s_mov_b32 s27, s26\ns_mov_b32 s28, 64")
    k.label("fb1")
    k(ld(KVB, 27, 0)); k(ld(KVB + 4, 27, 1024))
    k("s_add_u32 s27, s27, 4096\ns_sub_u32 s28, s28, 1")
    k("s_waitcnt vmcnt(0)")
    k(MFMA(SB, KVB, Q, "0")); k(MFMA(SB, KVB + 4, Q + 4))
    for i in range(0, 16, 2): k(f"v_max3_f32 v8, v8, v{SB+i}, v{SB+i+1}")
    k("s_cmp_lg_u32 s28, 0")
    k(f"s_cbranch_scc1 {k.L('fb1')}")
    k("v_mov_b32 v9, v8")
    k("v_permlane32_swap_b32 v8, v9")
    k("v_max_f32 v8, v8, v9")
    for r in range(O, O + 16): k(f"v_mov_b32 v{r}, 0")
    k("s_mov_b32 s27, s26\ns_mov_b32 s28, 64")
    k.label("fb2")
    for i in range(4): k(ld(KVB + 4 * i, 27, 1024 * i))
    k("s_add_u32 s27, s27, 4096\ns_sub_u32 s28, s28, 1")
    k("s_waitcnt vmcnt(0)")
    k(MFMA(SB, KVB, Q, "0")); k(MFMA(SB, KVB + 4, Q + 4))
    for i in range(16): k(f"v_sub_f32 v{SB+i}, v{SB+i}, v8")
    for i in range(16): k(f"v_exp_f32 v{SB+i}, v{SB+i}")
    k(SMF(O, KVB + 8, SB, IDX)); k(SMF(O, KVB + 12, SB + 8, IDX))
    k("s_nop 7")
    k("s_cmp_lg_u32 s28, 0")
    k(f"s_cbranch_scc1 {k.L('fb2')}")
    k(f"v_mov_b32 v6, v{O+12}\nv_mov_b32 v7, v{O+12}")
    k("v_permlane32_swap_b32 v7, v6")
    k(f"s_branch {k.L('norm')}")
    return k

def gen_gemm64(which):
    K3 = which == 3
    NST = 4 if K3 else 14
    NS = 4 if K3 else 8
    MRG = NS * 16384
    XT = MRG + 16384
    k = Kernel(f"k{which}_kernel", 256 if K3 else 224, 512, XT + 8192, nvgpr=256)
    SW, SWS, SR = 8, 12, 16
    if K3:
        srds = [(SW, 16, D * D * 2), (SWS, 72, WS_SIZE), (SR, 0, S * D * 2), (40, 32, D * F * 2), (44, 40, D * F * 2)]
    else:
        srds = [(SW, 48, F * D * 2), (SWS, 72, WS_SIZE), (SR, 56, S * D * 2)]
    prologue(k, 252 if K3 else 224, srds)
    if K3:
        k("s_cmp_ge_u32 s2, 224")
        k(f"s_cbranch_scc1 {k.L('cs')}")
    k("s_lshl_b32 s20, s6, 2\ns_and_b32 s4, s7, 3\ns_or_b32 s20, s20, s4")
    k("s_lshr_b32 s21, s7, 2")
    k("s_cmp_ge_u32 s3, 4")
    k(f"s_cbranch_scc1 {k.L('loader')}")
    k("s_and_b32 s22, s3, 1\ns_lshr_b32 s23, s3, 1")
    k("s_lshl_b32 s24, s20, 1\ns_add_u32 s24, s24, s22")
    NKS = 32 if K3 else 112
    k(f"s_mul_i32 s25, s24, {NKS*1024}\ns_lshl_b32 s4, s23, 12\ns_add_u32 s25, s25, s4\ns_add_u32 s25, s25, {OF if K3 else HH}")
    k(f"s_lshl_b32 s4, s21, 1\ns_add_u32 s29, s4, s23")
    k(f"s_mul_i32 s26, s24, {28*1024}\ns_lshl_b32 s4, s29, 11\ns_add_u32 s26, s26, s4\ns_add_u32 s26, s26, {HF}")
    k("v_lshlrev_b32 v2, 4, v1")
    ACC, WF, RES, AR = 16, 48, 80, 88
    NA = 16 if K3 else 40
    vm = Vm()
    def lda(n):
        st, i = divmod(n, 4)
        o = []
        if i == 0 and st > 0: o.append("s_add_u32 s25, s25, 8192")
        o.append(f"buffer_load_dwordx4 {vr(AR+4*(n%NA),4)}, v2, {sr(SWS,4)}, s25 offen offset:{1024*i}")
        vm.issue(("a", n)); return o
    k("s_waitcnt lgkmcnt(0)")
    for n in range(NA):
        for s in lda(n): k(s)
    if not K3:
        for s in range(2):
            k(f"buffer_load_dwordx4 {vr(RES+4*s,4)}, v2, {sr(SWS,4)}, s26 offen offset:{1024*s}")
        vm.issue("res", 2)
    k("v_bfe_u32 v3, v1, 2, 2\nv_lshrrev_b32 v4, 5, v1\nv_lshl_add_u32 v3, v4, 2, v3\nv_lshlrev_b32 v3, 7, v3")
    k("v_bfe_u32 v4, v1, 4, 1\nv_lshl_add_u32 v3, v4, 5, v3")
    k("v_and_b32 v4, 1, v1\nv_lshl_add_u32 v3, v4, 4, v3")
    k("v_bfe_u32 v4, v1, 1, 1\nv_lshl_add_u32 v3, v4, 3, v3")
    k("v_bfe_u32 v4, v1, 3, 1\nv_xor_b32 v4, s23, v4\nv_lshl_add_u32 v3, v4, 6, v3")
    k(f"s_mul_i32 s4, s23, {(56 if K3 else 64)*128}")
    k("v_add_u32 v8, s4, v3\nv_xor_b32 v9, 64, v8")
    if not K3: k("v_add_u32 v10, 0x10000, v8\nv_add_u32 v11, 0x10000, v9")
    k(f"s_lshl_b32 s4, s3, 12\ns_add_u32 s4, s4, {MRG}")
    k("v_add_u32 v12, s4, v2\nv_xor_b32 v13, 8192, v12")
    def reads(un):
        st, hh = divmod(un, 2); b = un & 1
        o = []
        for s in range(2):
            if K3: base, ar = (112 * st + 28 * hh + 16 * s) * 128, 8
            else:
                sl = st % NS
                base, ar = (sl % 4) * 16384 + (32 * hh + 16 * s) * 128, 8 + 2 * (sl // 4)
            for c in range(2):
                for h in range(2):
                    o.append(f"ds_read_b64_tr_b16 {vr(WF+16*b+8*s+4*c+2*h,2)}, v{ar+c} offset:{base+1024*h}")
        return o
    k.tag = f"k{which}main"
    k("s_barrier")
    stamp(k, 1)
    for s in reads(0): k(s)
    NU = 2 * NST
    for un in range(NU):
        b = un & 1
        r = reads(un + 1) if un + 1 < NU else []
        k(f"s_waitcnt vmcnt({vm.cnt(('a', 2*un+1))}) lgkmcnt(0)")
        for s in range(2):
            n = 2 * un + s
            for c in range(2):
                k(MFMA(ACC + 16 * c, WF + 16 * b + 8 * s + 4 * c, AR + 4 * (n % NA), "0" if n == 0 else None))
                i = 2 * s + c
                if i == 0 and b == 1 and r: k("s_barrier")
                for t in r[3 * i:3 * i + 3]: k(t)
                if i == 3:
                    for m in (2 * un - 2 + NA, 2 * un - 1 + NA):
                        if NA <= m < NKS // 2:
                            for t in lda(m): k(t)
    k.tag = f"k{which}epi"
    if K3:
        k("v_and_b32 v3, 31, v1\nv_lshrrev_b32 v4, 5, v1\nv_bfe_u32 v5, v1, 1, 3\nv_xor_b32 v4, v4, v5")
        k("s_lshl_b32 s4, s23, 2\nv_xor_b32 v4, s4, v4\nv_lshlrev_b32 v3, 7, v3\nv_lshl_add_u32 v3, v4, 4, v3")
        k(f"s_lshl_b32 s4, s22, 12\ns_add_u32 s4, s4, {XT}\nv_add_u32 v3, s4, v3\nv_xor_b32 v4, 32, v3")
        k(f"ds_read_b128 {vr(RES,4)}, v3\nds_read_b128 {vr(RES+4,4)}, v4")
    else:
        k("v_and_b32 v3, 31, v1\nv_lshrrev_b32 v4, 5, v1\nv_bfe_u32 v5, v1, 1, 2\nv_xor_b32 v4, v4, v5")
        k(f"s_lshl_b32 s4, s3, 11\ns_add_u32 s4, s4, {XT}")
        k("v_lshlrev_b32 v3, 6, v3\nv_lshl_add_u32 v3, v4, 4, v3\nv_add_u32 v3, s4, v3\nv_xor_b32 v4, 32, v3")
        k("v_bfe_u32 v5, v1, 3, 2\nv_xor_b32 v5, v5, v1\nv_and_b32 v5, 3, v5\nv_lshrrev_b32 v6, 2, v1")
        k("v_mul_u32_u24 v6, 896, v6\nv_lshl_add_u32 v6, v5, 4, v6")
        k("v_add_u32 v5, s4, v2")
    for i in range(4): k(f"ds_write_b128 v12, {vr(ACC+16+4*i,4)} offset:{1024*i}")
    k("s_waitcnt vmcnt(0) lgkmcnt(0)")
    k("s_barrier")
    for i in range(4): k(f"ds_read_b128 {vr(ACC+16+4*i,4)}, v13 offset:{1024*i}")
    for i in range(8):
        k(f"v_lshlrev_b32 v{WF+2*i}, 16, v{RES+i}\nv_and_b32 v{WF+2*i+1}, 0xffff0000, v{RES+i}")
    for i in range(8): k(f"v_pk_add_f32 {vr(ACC+2*i,2)}, {vr(ACC+2*i,2)}, {vr(WF+2*i,2)}")
    k("s_waitcnt lgkmcnt(0)")
    for i in range(8): k(f"v_pk_add_f32 {vr(ACC+2*i,2)}, {vr(ACC+2*i,2)}, {vr(ACC+16+2*i,2)}")
    for i in range(8): k(f"v_cvt_pk_bf16_f32 v{RES+i}, v{ACC+2*i}, v{ACC+2*i+1}")
    if K3:
        for s in range(2):
            k(f"buffer_store_dwordx4 {vr(RES+4*s,4)}, v2, {sr(SWS,4)}, s26 offen offset:{1024*s}")
        k(f"v_pk_mul_f32 v[4:5], {vr(ACC,2)}, {vr(ACC,2)}")
        for i in range(1, 8): k(f"v_pk_fma_f32 v[4:5], {vr(ACC+2*i,2)}, {vr(ACC+2*i,2)}, v[4:5]")
        for i in range(1, 8): k(f"v_pk_add_f32 {vr(ACC,2)}, {vr(ACC,2)}, {vr(ACC+2*i,2)}")
        k(f"v_add_f32 v4, v4, v5\nv_add_f32 v5, v{ACC}, v{ACC+1}")
        k("v_lshlrev_b32 v6, 2, v1")
        k(f"s_mul_i32 s4, s24, 14\ns_add_u32 s4, s4, s29\ns_lshl_b32 s4, s4, 8\ns_add_u32 s4, s4, {ST}")
        k("v_permlane32_swap_b32 v5, v4")
        k("v_add_f32 v4, v4, v5")
        k(f"buffer_store_dword v4, v6, {sr(SWS,4)}, s4 offen")
    else:
        k(f"ds_write_b128 v3, {vr(RES,4)}\nds_write_b128 v4, {vr(RES+4,4)}")
        k(f"s_mul_i32 s4, s24, {32*896}\ns_lshl_b32 s5, s29, 6\ns_add_u32 s4, s4, s5\ns_add_u32 s5, s4, {16*896}")
        k("s_waitcnt lgkmcnt(0)")
        k(f"ds_read_b128 {vr(RES,4)}, v5\nds_read_b128 {vr(RES+4,4)}, v5 offset:1024")
        k("s_waitcnt lgkmcnt(1)")
        k(f"buffer_store_dwordx4 {vr(RES,4)}, v6, {sr(SR,4)}, s4 offen")
        k("s_waitcnt lgkmcnt(0)")
        k(f"buffer_store_dwordx4 {vr(RES+4,4)}, v6, {sr(SR,4)}, s5 offen")
    finish(k, which - 1, SWS, 2)
    k.tag = f"k{which}ld"
    k.label("loader")
    k("s_sub_u32 s22, s3, 4")
    k("v_lshrrev_b32 v2, 3, v1\nv_mul_u32_u24 v2, 896, v2\nv_and_b32 v3, 7, v1")
    k("v_bfe_u32 v8, v1, 4, 1\nv_lshlrev_b32 v8, 2, v8\nv_xor_b32 v8, v8, v3\nv_lshl_add_u32 v4, v8, 4, v2")
    for i in range(1, 4): k(f"v_add_u32 v{4+i}, {i*(7168-1024)}, v4")
    k(f"s_mul_i32 s24, s22, {32*896}\ns_lshl_b32 s4, s21, 7\ns_add_u32 s24, s24, s4")
    k("s_lshl_b32 s25, s22, 12")
    vm = Vm()
    def dma(st):
        k(f"s_add_u32 m0, s25, {(st%NS)*16384}")
        k(f"s_add_u32 s5, s24, {st*128*896}")
        for i in range(4): k(f"buffer_load_dwordx4 v{4+i}, {sr(SW,4)}, s5 offen offset:{1024*i} lds")
        vm.issue(st, 4)
    k("s_waitcnt lgkmcnt(0)")
    for st in range(NS - 1): dma(st)
    if K3:
        k("v_lshrrev_b32 v8, 4, v1\nv_xor_b32 v8, v8, v3\nv_lshl_add_u32 v9, v8, 4, v2")
        k(f"v_xor_b32 v8, 4, v8\nv_lshl_add_u32 v10, v8, 4, v2\nv_add_u32 v10, {7168-1024}, v10")
        k(f"s_lshl_b32 s5, s22, 11\ns_add_u32 m0, s5, {XT}")
        k(f"s_lshl_b32 s5, s20, 2\ns_add_u32 s5, s5, s22\ns_mul_i32 s5, s5, {16*896}\ns_add_u32 s5, s5, s4")
        k(f"buffer_load_dwordx4 v9, {sr(SR,4)}, s5 offen lds")
        k(f"buffer_load_dwordx4 v10, {sr(SR,4)}, s5 offen offset:1024 lds")
        vm.issue("x", 2)
    dma(NS - 1)
    for st in range(NST):
        k(f"s_waitcnt vmcnt({vm.cnt(st)})")
        k("s_barrier")
        if st >= 1 and st - 1 + NS < NST: dma(st - 1 + NS)
    k("s_endpgm")
    if K3:
        k.tag = "k3cs"
        k.label("cs")
        k("s_sub_u32 s20, s2, 224")
        k("s_and_b32 s22, s3, 1\ns_lshr_b32 s23, s3, 1")
        k("v_lshrrev_b32 v2, 3, v1\nv_mul_u32_u24 v2, 3584, v2\nv_and_b32 v3, 7, v1\nv_lshl_add_u32 v2, v3, 4, v2")
        k(f"s_mul_i32 s24, s23, {112*3584}\ns_lshl_b32 s4, s20, 7\ns_add_u32 s24, s24, s4")
        k("s_waitcnt lgkmcnt(0)")
        k("s_cmp_eq_u32 s22, 0")
        k("s_cselect_b32 s40, s40, s44\ns_cselect_b32 s41, s41, s45")
        for i in range(14):
            k(f"buffer_load_dwordx4 {vr(16+4*i,4)}, v2, s[40:43], s24 offen")
            k(f"s_add_u32 s24, s24, {8*3584}")
        for d in range(4):
            k(f"v_cmp_eq_u32 vcc, {2*d}, v3\nv_cmp_eq_u32 s[30:31], {2*d+1}, v3")
            k("v_mov_b32 v4, 0x3f80\nv_mov_b32 v5, 0x3f800000")
            k(f"v_cndmask_b32 v{8+d}, 0, v4, vcc")
            k(f"v_cndmask_b32 v{8+d}, v{8+d}, v5, s[30:31]")
        for i in range(14):
            k(f"s_waitcnt vmcnt({13-i})")
            k(MFMA16(12, 8, 16 + 4 * i, "0" if i == 0 else None))
        k("v_and_b32 v4, 15, v1\nv_lshlrev_b32 v4, 5, v4\nv_and_b32 v5, 16, v1\nv_add_u32 v4, v4, v5")
        k("s_lshl_b32 s4, s22, 11\ns_lshl_b32 s5, s23, 9\ns_add_u32 s4, s4, s5\nv_add_u32 v4, s4, v4")
        k("ds_write_b128 v4, v[12:15]")
        k("s_waitcnt lgkmcnt(0)")
        k("s_barrier")
        k("s_cmp_ge_u32 s3, 4")
        k(f"s_cbranch_scc1 {k.L('exit')}")
        k("v_and_b32 v4, 15, v1\nv_lshlrev_b32 v4, 2, v4\nv_bfe_u32 v5, v1, 4, 1\nv_lshl_add_u32 v4, v5, 11, v4")
        k("s_lshl_b32 s4, s3, 6\nv_add_u32 v4, s4, v4")
        for i in range(8): k(f"ds_read_b32 v{16+i}, v4 offset:{256*i}")
        hi_mask(k, 30)
        k(f"s_lshl_b32 s4, s20, 2\ns_add_u32 s4, s4, s3\ns_lshl_b32 s4, s4, 8\ns_add_u32 s4, s4, {CS}")
        k("v_lshlrev_b32 v6, 2, v1")
        k("s_waitcnt lgkmcnt(0)")
        for i in range(1, 8): k(f"v_add_f32 v16, v16, v{16+i}")
        k("v_cvt_pk_bf16_f32 v17, v16, v16\nv_and_b32 v18, 0xffff0000, v17\nv_sub_f32 v16, v16, v18")
        k("v_cvt_pk_bf16_f32 v16, v16, v16")
        k("v_cndmask_b32 v16, v17, v16, s[30:31]")
        k(f"buffer_store_dword v16, v6, {sr(SWS,4)}, s4 offen")
        k("s_endpgm")
    return k

def gen_k4():
    NS, NST, NF = 8, 14, CFG["k4_nf"]
    k = Kernel("k4_kernel", 224, 512, NS * 16384, nvgpr=256)
    SG, SU, SWS = 8, 12, 16
    prologue(k, 224, [(SG, 32, D * F * 2), (SU, 40, D * F * 2), (SWS, 72, WS_SIZE)])
    k("s_and_b32 s20, s6, 3\ns_lshl_b32 s20, s20, 2\ns_and_b32 s4, s7, 3\ns_or_b32 s20, s20, s4")
    k("s_lshr_b32 s21, s6, 2\ns_mul_i32 s21, s21, 7\ns_lshr_b32 s4, s7, 2\ns_add_u32 s21, s21, s4")
    k("s_cmp_ge_u32 s3, 4")
    k(f"s_cbranch_scc1 {k.L('loader')}")
    k("s_lshl_b32 s24, s20, 2\ns_add_u32 s24, s24, s3")
    k(f"s_mul_i32 s25, s24, {28*1024}\ns_add_u32 s25, s25, {HF}")
    k(f"s_mul_i32 s26, s24, {14*256}\ns_add_u32 s26, s26, {ST}")
    k(f"s_lshl_b32 s27, s21, 11\ns_add_u32 s27, s27, {CS}")
    k(f"s_mul_i32 s28, s24, {112*1024}\ns_lshl_b32 s4, s21, 13\ns_add_u32 s28, s28, s4\ns_add_u32 s28, s28, {HH}")
    k("v_lshlrev_b32 v2, 4, v1\nv_lshlrev_b32 v3, 2, v1")
    AD, TMP, AUGB, HR, WF, ACC = 8, 16, 36, 40, 96, 128
    NH, NW = 14, 8
    vm = Vm()
    def ldh(n):
        o = []
        if n % 4 == 0 and n > 0: o.append("s_add_u32 s25, s25, 4096")
        o.append(f"buffer_load_dwordx4 {vr(HR+4*(n%NH),4)}, v2, {sr(SWS,4)}, s25 offen offset:{1024*(n%4)}")
        vm.issue(("h", n)); return o
    k("s_waitcnt lgkmcnt(0)")
    STR = HR + 40
    for i in range(14): k(f"buffer_load_dword v{STR+i}, v3, {sr(SWS,4)}, s26 offen offset:{256*i}")
    vm.issue("st", 14)
    PRE = 6
    for n in range(PRE):
        for s in ldh(n): k(s)
    for i in range(8): k(f"buffer_load_dword v{TMP+2*i}, v3, {sr(SWS,4)}, s27 offen offset:{256*i}")
    vm.issue("cs", 8)
    for r in [TMP + 2 * i + 1 for i in range(8)] + [TMP + 16, TMP + 17, AUGB + 1, AUGB + 2, AUGB + 3]: k(f"v_mov_b32 v{r}, 0")
    k("v_bfe_u32 v4, v1, 2, 2\nv_lshrrev_b32 v5, 5, v1\nv_lshl_add_u32 v4, v5, 3, v4\nv_lshlrev_b32 v4, 7, v4")
    k("v_bfe_u32 v5, v1, 4, 1\nv_lshl_add_u32 v4, v5, 12, v4")
    k("v_and_b32 v6, 3, v1\nv_lshl_add_u32 v4, v6, 3, v4")
    k("v_bfe_u32 v6, v1, 3, 1\nv_lshl_add_u32 v5, v6, 1, v5")
    k(f"v_lshl_add_u32 v{AD}, v5, 5, v4")
    for i in range(1, 4): k(f"v_xor_b32 v{AD+i}, {32*i}, v{AD}")
    for i in range(4): k(f"v_add_u32 v{AD+4+i}, 0x10000, v{AD+i}")
    k(f"s_waitcnt vmcnt({vm.cnt('st')})")
    for i in range(1, 7): k(f"v_pk_add_f32 {vr(STR,2)}, {vr(STR,2)}, {vr(STR+2*i,2)}")
    k(f"v_add_f32 v4, v{STR}, v{STR+1}")
    k(f"v_mul_f32 v4, {f32(1.0/D)}, v4")
    k("v_mov_b32 v5, v4")
    k("v_permlane32_swap_b32 v4, v5")
    k("v_fma_f32 v5, -v4, v4, v5")
    k("v_max_f32 v5, 0, v5")
    k(f"v_add_f32 v5, {f32(1e-5)}, v5")
    k("v_rsq_f32 v6, v5")
    k("v_cvt_pk_bf16_f32 v7, -v4, -v4\nv_and_b32 v7, 0xffff0000, v7\nv_sub_f32 v7, -v4, v7")
    k(f"v_cvt_pk_bf16_f32 v{AUGB}, -v4, v7")
    k("v_mul_f32 v5, v5, v6")
    k(f"v_mul_f32 v4, {f32(-LOG2E)}, v6")
    NM = 28 - NF
    sched = []
    for ks in range(NM):
        sched += [(ks, t) for t in range(8)]
        if ks == 2: sched += [(-1, t) for t in range(8)]
    for t in range(8): sched += [(ks, t) for ks in range(NM, 28)]
    real = [x for x in sched if x[0] >= 0]
    slot = {x: i % NW for i, x in enumerate(real)}
    def reads(x):
        ks, t = x
        sl = (ks // 2) % NS
        off = (sl % 4) * 16384 + (t // 4) * 8192 + (ks & 1) * 2048
        return [f"ds_read_b64_tr_b16 {vr(WF+4*slot[x]+2*h,2)}, v{AD+4*(sl//4)+t%4} offset:{off+512*h}" for h in range(2)]
    def epi(t):
        a = ACC + 16 * t; p = TMP + 4 * (t & 1); o = []
        for i in range(8): o.append(f"v_mul_f32 v{a+i}, v{a+i}, v4")
        for i in range(8): o.append(f"v_exp_f32 v{a+i}, v{a+i}")
        for i in range(8): o.append(f"v_fma_f32 v{a+i}, v{a+i}, v5, v5")
        for i in range(8): o.append(f"v_rcp_f32 v{a+i}, v{a+i}")
        for i in range(8): o.append(f"v_mul_f32 v{a+i}, v{a+i}, v{a+8+i}")
        for i in range(4): o.append(f"v_cvt_pk_bf16_f32 v{p+i}, v{a+2*i}, v{a+2*i+1}")
        if t == 4: o.append("s_add_u32 s28, s28, 4096")
        o.append(f"buffer_store_dwordx4 {vr(p,4)}, v2, {sr(SWS,4)}, s28 offen offset:{1024*(t%4)}")
        return o
    RA = 5
    k.tag = "k4main"
    k("s_barrier")
    stamp(k, 1)
    nbar = 1; nread = 0; nh = PRE; hwait = -1
    for x in real[:RA]:
        for s in reads(x): k(s)
    nread = RA
    ndone = 0; pend = []
    for x in sched:
        ks, t = x
        if ks < 0:
            if t == 0: k(f"s_waitcnt vmcnt({vm.cnt('cs')})")
            k(MFMA(ACC + 16 * t, TMP + 2 * t, AUGB))
            continue
        w = f"lgkmcnt({2*(nread-ndone-1)})"
        if ks > hwait:
            w = f"vmcnt({vm.cnt(('h', ks))}) " + w; hwait = ks
        k("s_waitcnt " + w)
        k(MFMA(ACC + 16 * t, WF + 4 * slot[x], HR + 4 * (ks % NH), "0" if ks == 0 else None))
        ndone += 1
        if nread < len(real):
            y = real[nread]
            while y[0] // 2 >= nbar:
                k("s_barrier"); nbar += 1
            for s in reads(y): k(s)
            nread += 1
        if ks < NM and t in (2, 6) and nh < 28 and nh < ks + NH - 1 and nh <= 2 * ks + PRE:
            for s in ldh(nh): k(s)
            nh += 1
        if ks >= NM:
            j = ks - NM
            if j == 0 and t > 0: pend = epi(t - 1)
            if j >= 1 and pend:
                cost = lambda s: 2 if s.startswith(("v_exp", "v_rcp")) else 1
                budget = -(-sum(cost(s) for s in pend) // (NF - j))
                while pend and budget > 0:
                    s = pend.pop(0); budget -= cost(s); k(s)
                    if s.startswith("buffer_store"): vm.issue("o")
    assert nh == 28 and nbar == NST and not pend
    k.tag = "k4epi"
    for s in epi(7): k(s)
    finish(k, 3, SWS, 2)
    k.tag = "k4ld"
    k.label("loader")
    k("s_sub_u32 s22, s3, 4\ns_and_b32 s23, s3, 1")
    k("v_lshrrev_b32 v2, 3, v1\nv_mul_u32_u24 v2, 3584, v2\nv_and_b32 v3, 7, v1")
    k("s_lshl_b32 s4, s23, 1")
    k("v_bfe_u32 v8, v1, 4, 1\nv_lshlrev_b32 v8, 2, v8\nv_xor_b32 v8, v8, v3\nv_xor_b32 v8, s4, v8\nv_lshl_add_u32 v4, v8, 4, v2")
    for i in range(1, 4): k(f"v_add_u32 v{4+i}, {i*(8*3584-1024)}, v4")
    k("s_lshr_b32 s4, s22, 1\ns_lshl_b32 s4, s4, 7\ns_lshl_b32 s24, s21, 8\ns_add_u32 s24, s24, s4")
    k("s_lshl_b32 s25, s22, 12")
    k("s_waitcnt lgkmcnt(0)")
    k("s_cmp_eq_u32 s23, 0")
    k(f"s_cselect_b32 s{SG}, s{SG}, s{SU}\ns_cselect_b32 s{SG+1}, s{SG+1}, s{SU+1}")
    vm = Vm()
    def dma(st):
        k(f"s_add_u32 m0, s25, {(st%NS)*16384}")
        k(f"s_add_u32 s5, s24, {st*32*3584}")
        for i in range(4): k(f"buffer_load_dwordx4 v{4+i}, {sr(SG,4)}, s5 offen offset:{1024*i} lds")
        vm.issue(st, 4)
    for st in range(NS): dma(st)
    for st in range(NST):
        k(f"s_waitcnt vmcnt({vm.cnt(st)})")
        k("s_barrier")
        if st >= 2 and st - 2 + NS < NST: dma(st - 2 + NS)
    k("s_endpgm")
    return k

def build(path, verbose=True, **cfg):
    CFG.update(cfg)
    ks = [gen_k1(), gen_k2(), gen_gemm64(3), gen_k4(), gen_gemm64(5)]
    ref = open("sequential_preLN__softmax_full_mha__glu_gated_glu__prompt.s.ref").read().split("\n")
    header = "\n".join(l for l in ref[:11])
    return write_file(path, ks, ks, header, verbose)

if __name__ == "__main__":
    out = sys.argv[1] if len(sys.argv) > 1 else "out.s"
    cfg = {}
    for a in sys.argv[2:]:
        n, v = a.split("="); cfg[n] = int(v)
    ok = build(out, **cfg)
    print("OK" if ok else "CHECK FAILED")
```

```python
import re, sys

def vr(b, n=1):
    return f"v{b}" if n == 1 else f"v[{b}:{b+n-1}]"
def ar(b, n=1):
    return f"a{b}" if n == 1 else f"a[{b}:{b+n-1}]"
def R(b, n=1):
    return vr(b, n) if b < 256 else ar(b - 256, n)
def sr(b, n=1):
    return f"s{b}" if n == 1 else f"s[{b}:{b+n-1}]"

_REG = re.compile(r"^-?\|?([vsa])(\d+)\|?$")
_RNG = re.compile(r"^-?\|?([vsa])\[(\d+):(\d+)\]\|?$")
def regs_of(tok):
    tok = tok.strip()
    m = _REG.match(tok)
    if m: return {(m.group(1), int(m.group(2)))}
    m = _RNG.match(tok)
    if m: return {(m.group(1), i) for i in range(int(m.group(2)), int(m.group(3)) + 1)}
    if tok in ("vcc", "vcc_lo", "vcc_hi"): return {("x", "vcc")}
    if tok in ("exec", "exec_lo", "exec_hi"): return {("x", "exec")}
    if tok == "m0": return {("x", "m0")}
    return set()

TRANS = ("v_exp_", "v_log_", "v_rcp_", "v_rsq_", "v_sqrt_", "v_sin_", "v_cos_")
NODST_S = ("s_cmp", "s_waitcnt", "s_barrier", "s_nop", "s_branch", "s_cbranch", "s_setprio", "s_endpgm",
           "s_sleep", "s_bitcmp", "s_sethalt", "s_setreg")

class Ins:
    __slots__ = ("text", "mn", "ops", "cls", "dst", "src", "A", "B", "C", "passes", "label", "target", "data", "tag", "lds", "flags", "wtag", "wait")
    def __init__(self, text, tag=""):
        self.wtag = None; self.wait = None
        if ";#" in text:
            text, self.wtag = text.split(";#"); text = text.strip(); self.wtag = self.wtag.strip()
        if text.startswith("WAIT"):
            self.wait = dict(p.split("=") for p in text.split()[1:]); text = "s_waitcnt vmcnt(0)"
        self.text = text; self.tag = tag
        self.label = None; self.target = None
        self.dst = set(); self.src = set(); self.A = self.B = self.C = set(); self.data = set()
        self.passes = 0; self.lds = False; self.flags = ""
        t = text.split(";")[0].strip()
        if t.endswith(":"):
            self.cls = "label"; self.label = t[:-1]; self.mn = ""; return
        if t.startswith("."):
            self.cls = "dir"; self.mn = ""; return
        parts = t.split(None, 1)
        mn = self.mn = parts[0]
        rest = parts[1] if len(parts) > 1 else ""
        toks = [x.strip() for x in re.split(r",(?![^\[]*\])", rest)] if rest else []
        if toks:
            last = toks[-1].split()
            self.flags = " ".join(last[1:])
            toks[-1] = last[0] if last else ""
        self.ops = toks
        R = [regs_of(x) for x in toks]
        U = lambda l: set().union(*l) if l else set()
        if mn.startswith("v_mfma") or mn.startswith("v_smfmac"):
            self.cls = "mfma"
            self.dst = R[0]; self.A = R[1]; self.B = R[2]
            if mn.startswith("v_smfmac"):
                self.C = R[0]; self.B = R[2] | R[3]
            else:
                self.C = R[3]
            self.src = self.A | self.B | self.C
            self.passes = 8 if "32x32" in mn else (4 if "16x16" in mn else 2)
        elif mn.startswith("v_"):
            self.cls = "valu"
            if mn.startswith("v_permlane") and "swap" in mn:
                self.dst = R[0] | R[1]; self.src = R[0] | R[1]
            elif mn.startswith("v_nop"):
                pass
            elif "_co_" in mn:
                self.dst = R[0] | R[1]; self.src = U(R[2:])
            else:
                self.dst = R[0]; self.src = U(R[1:])
                if mn.startswith(("v_fmac", "v_dot2c", "v_mac", "v_writelane")) or "dpp" in mn or "sdwa" in mn:
                    self.src |= R[0]
                if mn.startswith("v_cmpx"): self.dst |= {("x", "exec")}
        elif mn.startswith("ds_"):
            self.cls = "ds"
            if mn.startswith("ds_read") or mn.startswith("ds_bpermute") or mn.startswith("ds_permute") or "rtn" in mn:
                self.dst = R[0]; self.src = U(R[1:])
            else:
                self.src = U(R)
        elif mn.startswith("buffer_") or mn.startswith("global_"):
            self.cls = "vmem"
            fl = self.flags.split()
            if "lds" in fl or "_lds_" in mn:
                self.lds = True; self.src = U(R) | {("x", "m0")}
            elif "_load" in mn:
                self.dst = R[0]; self.src = U(R[1:])
            elif "_atomic" in mn:
                self.src = U(R)
                if "sc0" in fl: self.dst = R[0]
            elif "_store" in mn:
                self.src = U(R)
                d = R[0] if mn.startswith("buffer_") else R[1]
                if len(d) >= 3: self.data = d
        elif mn.startswith(("s_load", "s_buffer_load", "s_memtime", "s_memrealtime")):
            self.cls = "smem"; self.dst = R[0]; self.src = U(R[1:])
        elif mn.startswith("s_"):
            self.cls = "salu"
            if mn.startswith(NODST_S):
                self.src = U(R)
                if mn.startswith(("s_branch", "s_cbranch")): self.target = toks[0]
            else:
                self.dst = R[0]; self.src = U(R[1:])
                if "saveexec" in mn: self.dst |= {("x", "exec")}
        else:
            raise ValueError("unknown instr: " + text)
    def states(self):
        if self.cls in ("label", "dir"): return 0
        if self.mn == "s_nop": return int(self.ops[0]) + 1
        return 1

def isvg(rs): return {r for r in rs if r[0] in "va"}
def issg(rs): return {r for r in rs if r[0] == "s" or r == ("x", "vcc")}
EXEC = ("x", "exec")

def need(P, C):
    n = 0
    if P.cls == "valu":
        pv, ps = isvg(P.dst), issg(P.dst)
        if C.cls == "vmem" and ps & C.src: n = max(n, 5)
        if C.cls == "valu":
            if ps & C.src:
                n = max(n, 4 if C.mn.startswith(("v_readlane", "v_writelane")) else 2)
            if "dpp" in C.mn and pv & C.src: n = max(n, 2)
            if C.mn.startswith(("v_readlane", "v_readfirstlane")) and pv & C.src: n = max(n, 1)
            if P.mn.startswith(TRANS) and not C.mn.startswith(TRANS) and pv & C.src: n = max(n, 1)
            if C.mn.startswith("v_permlane") and pv & C.src: n = max(n, 2)
            if ("op_sel" in P.flags and not P.mn.startswith("v_pk") or "sdwa" in P.mn) and pv & (C.src | C.dst): n = max(n, 1)
            if P.mn.startswith("v_dot") and pv & (C.src | C.dst) and P.mn != C.mn: n = max(n, 3)
            if EXEC in P.dst: n = max(n, 5)
        if C.cls == "mfma":
            if pv & C.src: n = max(n, 3 if P.mn.startswith("v_dot") else 2)
            if EXEC in P.dst: n = max(n, 4)
    if P.cls == "salu" and ("x", "m0") in P.dst and (C.lds or "addtid" in C.mn): n = max(n, 1)
    if P.cls == "vmem" and P.data and P.data & C.dst:
        n = max(n, 2 if C.cls in ("valu", "mfma") else 1)
    if P.cls == "mfma":
        i = {2: 0, 4: 1, 8: 2}[P.passes]
        if C.cls == "mfma":
            if P.dst & C.C:
                if P.dst == C.C and P.passes == C.passes: n = max(n, (2, 0, 0)[i])
                else: n = max(n, (4, 6, 10)[i])
            if P.dst & (C.A | C.B): n = max(n, (5, 8, 12)[i])
            if P.dst & C.dst and not (P.dst & C.C) and C.passes < P.passes: n = max(n, (5, 8, 12)[i])
        elif C.cls in ("valu", "vmem", "ds"):
            if P.dst & (C.src | C.dst): n = max(n, (5, 8, 12)[i])
            if C.cls == "valu" and P.C & C.dst: n = max(n, (1, 3, 7)[i])
    return n

class Kernel:
    def __init__(self, name, grid, block, lds, nvgpr=256, nsgpr=100):
        self.name = name; self.grid = grid; self.block = block; self.lds = lds
        self.nvgpr = nvgpr; self.nsgpr = nsgpr
        self.ins = []; self.tag = ""
    def __call__(self, text):
        for t in text.split("\n"):
            t = t.strip()
            if t: self.ins.append(Ins(t, self.tag))
    def L(self, s): return f"{self.name}_{s}"
    def label(self, s): self(self.L(s) + ":")
    def resolve_waits(self):
        for i, x in enumerate(self.ins):
            if not x.wait: continue
            parts = []
            for key, cls, mx, nm in (("vm", "vmem", 63, "vmcnt"), ("lg", "ds", 15, "lgkmcnt")):
                if key not in x.wait: continue
                tags = set(x.wait[key].split(","))
                if tags == {"0"}:
                    parts.append(f"{nm}(0)"); continue
                n = 0; found = None; seen = set()
                for j in range(i - 1, -1, -1):
                    y = self.ins[j]
                    if y.cls != cls or y.wtag == "nc": continue
                    if y.wtag in tags:
                        seen.add(y.wtag)
                        if found is None: found = n
                    n += 1
                assert seen == tags, (x.wait, tags - seen)
                for j in range(i + 1, len(self.ins)):
                    y = self.ins[j]
                    assert not (y.cls == cls and y.wtag in tags), ("tag issued after its wait", x.wait, y.text)
                parts.append(f"{nm}({min(found, mx)})")
            x.text = "s_waitcnt " + " ".join(parts); x.wait = None
    def _cfg(self):
        lab = {x.label: i for i, x in enumerate(self.ins) if x.label}
        preds = [[] for _ in self.ins]
        for i, x in enumerate(self.ins):
            if x.target: preds[lab[x.target]].append(i)
            if i + 1 < len(self.ins) and x.mn not in ("s_branch", "s_endpgm"): preds[i + 1].append(i)
        return lab, preds
    def fix_hazards(self, verbose=True):
        i = 0; log = []
        lab, preds = self._cfg()
        while i < len(self.ins):
            C = self.ins[i]
            if C.cls in ("valu", "mfma", "vmem", "ds"):
                deficit = 0; why = None
                stack = [(p, 0) for p in preds[i]]; seen = {}
                while stack:
                    p, d = stack.pop()
                    if d >= 12 or seen.get(p, 99) <= d: continue
                    seen[p] = d
                    P = self.ins[p]
                    n = need(P, C) - d
                    if n > deficit: deficit = n; why = P.text
                    for q in preds[p]: stack.append((q, d + P.states()))
                if deficit > 0:
                    self.ins.insert(i, Ins(f"s_nop {deficit-1}", C.tag))
                    log.append((C.tag, deficit, why, C.text))
                    lab, preds = self._cfg()
                    i += 1
            i += 1
        if verbose:
            for t in log: print(f"  [{self.name}] nop {t[1]} @{t[0]}: {t[2]}  ->  {t[3]}")
        return log
    def check_waits(self):
        lab, _ = self._cfg()
        errs = set(); visits = {}
        stack = [(0, (), ())]
        while stack:
            pc, vm, lg = stack.pop()
            vm = list(vm); lg = list(lg)
            while pc < len(self.ins):
                x = self.ins[pc]
                if x.label:
                    visits[pc] = visits.get(pc, 0) + 1
                    if visits[pc] > 4: break
                if x.mn == "s_waitcnt":
                    m = re.search(r"vmcnt\((\d+)\)", x.text)
                    if m:
                        k = int(m.group(1)); assert k < 64
                        vm = vm[len(vm) - k:] if k < len(vm) and k > 0 else ([] if k == 0 else vm)
                    m = re.search(r"lgkmcnt\((\d+)\)", x.text)
                    if m:
                        k = int(m.group(1)); assert k < 16
                        if k == 0: lg = []
                        else:
                            lg = [e for e in lg if e[0] == "smem"] + [e for e in lg if e[0] != "smem"][-k:]
                touched = x.src | x.dst
                for d in vm:
                    if d & touched and not (x.cls == "vmem" and not (d & x.src)): errs.add((pc, "vm", x.text, x.tag))
                for c, d in lg:
                    if d & touched and not (x.cls == "ds" and c == "ds" and not (d & x.src)): errs.add((pc, "lgkm", x.text, x.tag))
                if x.cls == "vmem":
                    vm.append(frozenset(x.dst))
                    if len(vm) > 63: errs.add((pc, "vmcnt overflow", x.text, x.tag))
                if x.cls in ("ds", "smem"): lg.append((x.cls, frozenset(x.dst)))
                if x.mn == "s_endpgm": break
                if x.target:
                    if x.mn == "s_branch": pc = lab[x.target]; continue
                    stack.append((lab[x.target], tuple(vm), tuple(lg)))
                pc += 1
        for e in sorted(errs): print(f"  [{self.name}] WAIT ERROR {e}")
        return not errs
    def check_regs(self):
        mv = max([r[1] for x in self.ins for r in (x.src | x.dst) if r[0] == "v"] + [0])
        ms = max([r[1] for x in self.ins for r in (x.src | x.dst) if r[0] == "s"] + [0])
        assert mv < self.nvgpr, (self.name, mv); assert ms < self.nsgpr, (self.name, ms)
        return mv, ms
    def body(self):
        o = [f".globl {self.name}", ".p2align 8", f".type {self.name},@function", f"{self.name}:"]
        for x in self.ins: o.append(x.text if x.cls == "label" else "    " + x.text)
        return "\n".join(o)
    def desc(self):
        return f""".p2align 6
.amdhsa_kernel {self.name}
  .amdhsa_next_free_vgpr {self.nvgpr}
  .amdhsa_next_free_sgpr {self.nsgpr}
  .amdhsa_accum_offset {min(256, (self.nvgpr + 3) // 4 * 4)}
  .amdhsa_group_segment_fixed_size 0
  .amdhsa_kernarg_size 80
  .amdhsa_user_sgpr_count 2
  .amdhsa_user_sgpr_kernarg_segment_ptr 1
  .amdhsa_system_sgpr_workgroup_id_x 1
.end_amdhsa_kernel"""

def write_file(path, kernels, launches, header="", verbose=True, single=False):
    ok = True
    for k in kernels:
        k.resolve_waits(); k.fix_hazards(verbose); ok &= k.check_waits()
        mv, ms = k.check_regs()
        if verbose: print(f"{k.name}: {sum(1 for x in k.ins if x.states())} instrs, max v{mv} s{ms}")
    o = [header] if header else []
    for k in launches:
        if single:
            o.append(f"; @launch grid=({k.grid},1,1) block=({k.block},1,1) lds={k.lds}"); continue
        o.append(f"; @launch kernel={k.name} grid=({k.grid},1,1) block=({k.block},1,1) lds={k.lds}")
    o.append('.amdgcn_target "amdgcn-amd-amdhsa--gfx950"')
    o.append(".text")
    for k in kernels: o.append(k.body())
    o.append('.section .rodata,"a"')
    for k in kernels: o.append(k.desc())
    open(path, "w").write("\n".join(o) + "\n")
    return ok
```

```python
from mega import *
import mega

def phase_cde(g):
    k = g.k; CFG = mega.CFG
    sXr, sRt = g.sXr, g.sRt
    sD, sDl, sHF, sHH, sTag, sE, sFl, sA, sB = 50, 51, 52, 53, 54, 56, 58, 59, 60
    vDa, vDs = 8, 12
    RES, NO, OF, WOF, XR = 32, 48, 64, 128, 240
    STL = 56 * KB
    k.tag = "win"
    k("s_cmp_ge_u32 s7, 28")
    k(f"s_cbranch_scc1 {k.L('spare')}")
    t = [k.L("spare") + ":", f"s_cmp_eq_u32 s{SWF+2}, 0", f"s_cbranch_scc1 {k.L('spare2')}",
         "s_sub_u32 s4, s7, 28", "s_lshl_b32 s4, s4, 2", "s_add_u32 s4, s4, s3", "s_lshl_b32 s4, s4, 13", f"s_add_u32 s4, s4, s{sR}",
         f"v_lshlrev_b32 v4, 7, v{vL}"]
    for off in [HF, HF + 128 * KB, ST - 64 * KB] + [HH + 128 * KB * i for i in range(7)]:
        t += [f"s_add_u32 s5, s4, {off}", f"buffer_load_dword v5, v4, {sr(SWS,4)}, s5 offen sc1"]
    t += [k.L("spare2") + ":", "WAIT vm=0 lg=0", f"s_branch {k.L('fin')}"]
    g.tail += t

    dslot = lambda e: (e + 3) % 6
    doff = lambda e: (dslot(e) // 3) * 48 * KB + (dslot(e) % 3) * 4096
    dreg = lambda e: 128 + 16 * e if e < 8 else A + 128 + 16 * (e - 8)
    def ddma(e):
        o = [f"s_add_u32 m0, s{sDl}, {doff(e)}"]
        o += [f"buffer_load_dwordx4 v{vDs+i}, {sr(SWD,4)}, s{sD} offen offset:{1024*i} lds ;#d{e}" for i in range(4)]
        return o + [f"s_add_u32 s{sD}, s{sD}, {32*896}"]
    def dconv(e):
        return [f"ds_read_b64_tr_b16 {R(dreg(e)+4*c+2*h,2)}, v{vDa+c} offset:{doff(e)+h*2048} ;#w{e}" for c in range(4) for h in range(2)]
    k(f"v_lshrrev_b32 v4, 3, v{vL}\nv_and_b32 v5, 6, v4\nv_and_b32 v6, 7, v{vL}\nv_xor_b32 v5, v5, v6")
    k(f"v_mul_u32_u24 v7, 896, v4\nv_lshl_add_u32 v{vDs}, v5, 4, v7")
    for i in range(1, 4): k(f"v_add_u32 v{vDs+i}, {i*6144}, v{vDs}")
    k(f"s_lshr_b32 s4, s{sJ}, 1\ns_lshl_b32 s4, s4, 7\ns_mul_i32 s{sD}, s3, {448*896}\ns_add_u32 s{sD}, s{sD}, s4")
    k(f"s_mul_i32 s{sDl}, s3, {12*KB}\ns_add_u32 s{sDl}, s{sDl}, {64*KB}")
    for e in range(3): emit(k, ddma(e))
    emit(k, g.left)
    k("WAIT vm=xr")
    for a in range(2):
        for i in range(2): k(f"v_permlane16_swap_b32 v{XR+4*a+i}, v{XR+4*a+2+i}")
    for i in range(8):
        k(f"v_lshlrev_b32 v{RES+2*i}, 16, v{XR+i}\nv_and_b32 v{RES+2*i+1}, 0xffff0000, v{XR+i}")
    k("WAIT vm=g13,wo\ns_barrier")
    for hh in range(8):
        for c in range(4):
            for h in range(2):
                rho = (c + ((7 * hh + h) >> 1)) & 3
                k(f"ds_read_b64_tr_b16 {vr(WOF+16*hh+4*c+2*h,2)}, v{vOa+rho} offset:{(28*hh+4*h)*128}")
    for u in range(g.readable, 14): emit(k, g.gconv(u))
    emit(k, lanes(4, [(2, 4, 128), (0, 2, 8), (3, 2, 32)], 5))
    k("s_and_b32 s4, s3, 1\ns_xor_b32 s4, s4, 1\ns_lshl_b32 s4, s4, 6")
    k(f"v_xor_b32 v4, s4, v4\nv_add_u32 v{vDa}, s{sDl}, v4")
    for c in range(1, 4): k(f"v_xor_b32 v{vDa+c}, {32*c}, v{vDa}")
    k(f"s_and_b32 s{sTag}, s{sN}, 0xffff0000")
    k(f"s_lshl_b32 s{sA}, s{sRt}, 14\ns_and_b32 s4, s3, 1\ns_lshl_b32 s4, s4, 13\ns_add_u32 s{sA}, s{sA}, s4\ns_add_u32 s{sA}, s{sA}, {OG}")
    def oloads(a, tag):
        o = []
        for q in range(2):
            o.append(f"s_add_u32 s4, s{sA}, {65536*a+4096*q}")
            o += [f"buffer_load_dwordx4 {vr(OF+32*a+16*q+4*i,4)}, v{vL16}, {sr(SWS,4)}, s4 offen offset:{1024*i} sc1 ;#{tag}" for i in range(4)]
        return o
    k("WAIT vm=o")
    emit(k, g.stamp())
    for a in range(2): emit(k, oloads(a, f"o{a}"))
    k("WAIT lg=0\ns_barrier")
    for e in range(3, 6): emit(k, ddma(e))
    k(f"s_and_b32 s{sRt}, s{sRt}, 7")
    k(f"s_mul_i32 s{sHF}, s{sP}, {8*14336}\ns_add_u32 s{sHF}, s{sHF}, s{sR}\ns_add_u32 s{sHF}, s{sHF}, {HF}")
    k(f"s_mul_i32 s{sHH}, s{sP}, {8*57344}\ns_add_u32 s{sHH}, s{sHH}, s{sR}\ns_add_u32 s{sHH}, s{sHH}, {HH}")
    k(f"s_mul_i32 s{sE}, s3, 14336\ns_add_u32 s{sE}, s{sE}, s{sHH}")
    k(f"s_lshl_b32 s{sFl}, s{sJ}, 2\ns_add_u32 s{sFl}, s{sFl}, s3")
    k(f"s_lshl_b32 s4, s{sFl}, 10\ns_add_u32 s{sHH}, s{sHH}, s4")
    k(f"s_lshl_b32 s4, s3, 12\nv_add_u32 v6, s4, v{vL16}\nv_xor_b32 v7, 4096, v6")
    vSr, vSw, vPo, vPd = 20, 21, 22, 23
    emit(k, lanes(vSw, [(5, 1, 7168), (0, 5, 4)], 4))
    k(f"v_min_u32 v{vPo}, 55, v{vL}\nv_lshlrev_b32 v{vPo}, 2, v{vPo}")
    k("s_mov_b32 s5, 0xffff")
    k.tag = "c"
    def ocheck(a):
        b = OF + 32 * a + 3
        o = [f"s_mov_b32 s{sCNT}, {SPIN}", f"WAIT vm=o{a}", k.L(f"oc{a}") + ":"]
        o += [f"v_xor_b32 v{b+4*i}, s{sTag}, v{b+4*i}" for i in range(8)]
        o += [f"v_or3_b32 v4, v{b}, v{b+4}, v{b+8}", f"v_or3_b32 v5, v{b+12}, v{b+16}, v{b+20}",
              f"v_or3_b32 v4, v4, v{b+24}, v{b+28}", "v_or_b32 v4, v4, v5",
              "v_cmp_lt_u32 vcc, s5, v4", f"s_cbranch_vccz {k.L(f'od{a}')}"]
        o += oloads(a, "nc") + [f"s_sub_u32 s{sCNT}, s{sCNT}, 1", "WAIT vm=0", f"s_cbranch_scc0 {k.L(f'oc{a}')}", k.L(f"od{a}") + ":"]
        return o
    for a in range(2):
        emit(k, ocheck(a))
        emit(k, g.stamp())
        mains = []
        for b in range(2):
            for hh in range(8):
                for c in range(2):
                    d = (RES if b else NO) + 8 * a + 4 * c
                    mains.append(M16(d, WOF + 16 * hh + 8 * b + 4 * c, OF + 32 * a + 4 * hh, "0" if hh == 0 and b == 0 else None))
        fx = {19 + c: [f"ds_write_b128 v6, {vr(NO+8*a+4*c,4)} offset:{2048*a+1024*c} ;#cx"] for c in range(2)}
        if a == 0:
            fx[1] = [f"s_mul_i32 s{sB}, s{sRt}, 14", f"s_and_b32 s4, s{sJ}, -2"]
            fx[2] = [f"s_add_u32 s{sB}, s{sB}, s4", "s_and_b32 s4, s3, 1"]
            fx[3] = [f"s_add_u32 s{sB}, s{sB}, s4"]
        else:
            fx[1] = [f"s_lshl_b32 s{sA}, s{sB}, 10", f"s_add_u32 s{sA}, s{sA}, s{sHF}"]
            fx[2] = [f"s_mul_i32 s4, s{sP}, 14336", f"s_add_u32 s4, s4, s{sR}"]
            fx[3] = [f"s_add_u32 s61, s4, {ST}", f"s_lshl_b32 s{sB}, s{sB}, 7"]
            fx[4] = [f"s_add_u32 s{sB}, s{sB}, s61", f"s_add_u32 s5, s{sA}, {4*14336}"]
            fx[26] = ["WAIT lg=cx", "s_barrier"]
            for i in range(4): fx[27 + i] = [f"ds_read_b128 {vr(NO+4*i,4)}, v7 offset:{1024*i} ;#cr{i//2}"]
        weave(k, mains, fx, [])
    HP = 64
    for a in range(2):
        k(f"WAIT lg=cr{a}")
        for i in range(4): k(f"v_pk_add_f32 {vr(RES+8*a+2*i,2)}, {vr(RES+8*a+2*i,2)}, {vr(NO+8*a+2*i,2)}")
        for i in range(4): k(f"v_cvt_pk_bf16_f32 v{HP+4*a+i}, v{RES+8*a+2*i}, v{RES+8*a+2*i+1}")
        emit(k, g.st2("buffer_store_dwordx4", vr(HP + 4 * a, 4), vL16, "s5" if a else f"s{sA}", 0, "h"))
    for a in range(2):
        r, q = RES + 8 * a, NO + 4 * a
        k(f"v_pk_add_f32 {vr(q,2)}, {vr(r,2)}, {vr(r+2,2)}")
        k(f"v_pk_mul_f32 {vr(q+2,2)}, {vr(r,2)}, {vr(r,2)}")
        for i in range(1, 4):
            if i > 1: k(f"v_pk_add_f32 {vr(q,2)}, {vr(q,2)}, {vr(r+2*i,2)}")
            k(f"v_pk_fma_f32 {vr(q+2,2)}, {vr(r+2*i,2)}, {vr(r+2*i,2)}, {vr(q+2,2)}")
    for i in range(4): k(f"v_add_f32 v{NO+2*i}, v{NO+2*i}, v{NO+2*i+1}")
    k(f"v_permlane32_swap_b32 v{NO}, v{NO+4}\nv_permlane32_swap_b32 v{NO+2}, v{NO+6}")
    k(f"v_add_f32 v4, v{NO}, v{NO+4}\nv_add_f32 v5, v{NO+2}, v{NO+6}")
    ONES, CS = 72, 48
    for i in range(2): k(f"v_mov_b32 v{ONES+i}, 0x3f803f80")
    k("v_permlane16_swap_b32 v4, v5")
    k("v_add_f32 v4, v4, v5")
    emit(k, g.st2("buffer_store_dword", "v4", vSw, f"s{sB}", 0, "h"))
    emit(k, g.stamp())
    if CFG["upto"] < 4: return
    k.tag = "cs"
    for i in range(2, 4): k(f"v_mov_b32 v{ONES+i}, 0x3f803f80")
    k(f"s_lshl_b32 s4, s{sP}, 8\ns_add_u32 s4, s4, s{sR}\ns_add_u32 s{sA}, s4, {FC}")
    k(f"s_lshl_b32 s{sFl}, s{sFl}, 2\ns_add_u32 s5, s{sA}, s{sFl}")
    pld, pchk = g.poll("fc", vPd, vPo, f"s{sA}", f"s{sN}")
    mains = [M16(CS + 4 * c, A + 16 * ks + 4 * c, ONES, "0" if ks == 0 else None) for ks in range(14) for c in range(4)]
    setup = lanes(6, [(5, 1, 1792), (0, 5, 4)], 4) + lanes(vSr, [(0, 4, 16)], 4, STL)
    setup += ["s_lshl_b32 s4, s3, 9"] + lanes(7, [(5, 1, 256)], 4, "s4") + [f"v_add_u32 v7, v7, v{vSr}"]
    for s in range(3):
        setup += [f"s_xor_b32 s4, s3, {s^3}", "s_mul_i32 s4, s4, 6144", f"s_add_u32 s4, s4, {2048*s}", f"v_add_u32 v{vMw+s}, s4, v{vL16}"]
    setup += ["s_mul_i32 s4, s3, 6144", f"v_add_u32 v{vMr}, s4, v{vL16}",
              "s_mul_i32 s4, s3, 3584", f"s_add_u32 s61, s61, s4",
              f"s_lshl_b32 s4, s{sP}, 9", f"s_add_u32 s4, s4, s{sR}", f"s_add_u32 s4, s4, {FD}", f"s_add_u32 s{sFl}, s{sFl}, s4",
              f"s_mul_i32 s{sB}, s3, 56", f"s_add_u32 s{sB}, s{sB}, s4"]
    conv = []
    for e in range(6): conv += [f"WAIT vm=d{e}"] + dconv(e)
    fx = {CFG["cflag"]: ["WAIT vm=h"] + g.st2("buffer_store_dword", f"v{vN}", vF0, "s5", 0, "fl"), 50: [pld]}
    weave(k, mains, fx, [(0, 48, conv), (0, 54, setup)])
    emit(k, pchk)
    emit(k, g.stamp())
    k.tag = "d"
    ACC, HB, STB, PKD, STT = 64, 96, 120, 16, 80
    NB, RA = 6, 4
    k(f"s_lshl_b32 s4, s3, 10\ns_add_u32 s5, s{sHF}, s4\ns_mov_b32 m0, s4")
    for i in range(7):
        k(f"buffer_load_dwordx4 v{vL16}, {sr(SWS,4)}, s5 offen sc1 lds")
        if i < 6: k("s_add_u32 m0, m0, 4096\ns_add_u32 s5, s5, 4096")
        if i == 3:
            for p in range(14): k(f"buffer_load_dword v{STT+p}, v6, {sr(SWS,4)}, s61 offen offset:{128*p} sc1 ;#sl")
    k(f"s_mul_i32 s61, s3, 7168\ns_add_u32 s{sHF}, s{sHF}, s61")
    k(f"v_min_u32 v{vPo}, 13, v{vL}\nv_lshlrev_b32 v{vPo}, 2, v{vPo}")
    def hdma(p):
        o = []
        for i in range(7):
            if i % 4 == 0: o += [f"s_add_u32 m0, s61, {(p%2)*28672+1024*i}", f"s_add_u32 s5, s{sHF}, {p*28672+1024*i}"]
            o.append(f"buffer_load_dwordx4 v{vL16}, {sr(SWS,4)}, s5 offen offset:{1024*(i%4)} sc1 lds ;#p{p}")
        return o
    hread = lambda n: f"ds_read_b128 {vr(HB+4*(n%NB),4)}, v{vL16} offset:{(n%56)*1024} ;#h{n}"
    k("WAIT vm=t0\ns_barrier")
    emit(k, g.stamp())
    for n in range(RA): k(hread(n))
    k("WAIT lg=h0")
    mains = []; fx = {}; streams = []
    add = lambda gp, l: fx.setdefault(gp, []).extend(l)
    bars = {14: "vm=t1 lg=sw", 28: "vm=p1 lg=h27", 56: "vm=p2 lg=h55", 84: "vm=p3 lg=h83"}
    for n in range(112):
        t, ks = divmod(n, 14)
        for c in range(4):
            mains.append(M16(ACC + 16 * (t & 1) + 4 * c, A + 16 * ks + 4 * c, HB + 4 * (n % NB), "0" if ks == 0 else None))
        m = n + RA
        if n + 3 in bars:
            add(4 * n, ["WAIT " + bars[n + 3], "s_barrier"])
            add(4 * n + 1, [hread(n + 3)]); add(4 * n + 2, [hread(n + 4)])
        elif m < 112 and m not in bars: add(4 * n, [hread(m)])
        if n < 111: add(4 * n + 3, [f"WAIT lg=h{n+1}"])
        if ks == 13: add(4 * n + 1, [f"ds_read_b96 {vr(STB+4*(t&1),3)}, v{vSr} offset:{256*t} ;#st{t}"])
    s = ["WAIT vm=sl"] + [f"v_add_f32 v{STT+i}, v{STT+i}, v{STT+7+i}" for i in range(7)]
    s += [f"v_add_f32 v{STT+i}, v{STT+i}, v{STT+4+i}" for i in range(3)]
    s += [f"v_add_f32 v{STT+i}, v{STT+i}, v{STT+2+i}" for i in range(2)]
    a, b, o = STT, STT + 1, STT + 4
    s += [f"v_add_f32 v{a}, v{a}, v{b}", f"v_mul_f32 v{a}, {f32(-1.0/D)}, v{a}", f"v_mov_b32 v{b}, v{a}", 1,
          f"v_permlane16_swap_b32 v{a}, v{b}", 1, f"v_fma_f32 v{b}, -v{a}, v{a}, -v{b}", f"v_max_f32 v{b}, 0, v{b}",
          f"v_add_f32 v{b}, {f32(1e-5)}, v{b}", f"v_mov_b32 v{o}, v{a}", f"v_rsq_f32 v{a}, v{b}",
          f"v_mul_f32 v{o+1}, {f32(-LOG2E)}, v{a}", f"v_mul_f32 v{o+2}, v{a}, v{b}", f"ds_write_b96 v7, {vr(o,3)} ;#sw"]
    streams.append((12, 36, s))
    def epi(t):
        a = ACC + 16 * (t & 1); nm, aa, sd = (STB + 4 * (t & 1) + i for i in range(3))
        o = [f"WAIT lg=st{t}"]
        o += [f"v_fmac_f32 v{a+i}, v{CS+i}, v{nm}" for i in range(8)]
        o += [f"v_mul_f32 v{a+i}, v{a+i}, v{aa}" for i in range(8)]
        o += [f"v_exp_f32 v{a+i}, v{a+i}" for i in range(8)]
        o += [f"v_fmac_f32 v{a+8+i}, v{CS+8+i}, v{nm}" for i in range(8)]
        o += [f"v_fma_f32 v{a+i}, v{a+i}, v{sd}, v{sd}" for i in range(8)]
        o += [f"v_rcp_f32 v{a+i}, v{a+i}" for i in range(8)]
        o += [f"v_mul_f32 v{a+i}, v{a+i}, v{a+8+i}" for i in range(8)]
        o += [f"v_cvt_pk_bf16_f32 v{PKD+i}, v{a+2*i}, v{a+2*i+1}" for i in range(4)]
        o += g.st2("buffer_store_dwordx4", vr(PKD, 4), vL16, f"s{sHH}", 0, f"hh{t}")
        return o + [f"s_add_u32 s{sHH}, s{sHH}, 57344"]
    doE = CFG["upto"] >= 5
    for t in range(7): streams.append((56 * (t + 1) + 3, 56 * (t + 1) + 55, epi(t)))
    streams.append((0, 54, hdma(1) + ddma(6) + ddma(7) + ddma(8)))
    streams.append((56, 98, ddma(9)))
    streams.append((103, 140, hdma(2)))
    streams.append((141, 210, ["WAIT vm=d7"] + dconv(6) + ddma(10) + dconv(7) + ddma(11)))
    streams.append((215, 250, hdma(3)))
    streams.append((251, 300, ["WAIT lg=w7"] + ddma(12) + ddma(13)))
    flag = lambda ev, t: [f"WAIT vm=hh{t}"] + g.st2("buffer_store_dword", f"v{vN}", vF0, f"s{sFl}", 256 * ev, "fl")
    if not doE:
        over = weave(k, mains, fx, streams)
        emit(k, epi(7))
        return
    add(56 * 5 + 30, flag(0, 3))
    p1, c1 = g.poll("f1", vPd, vPo, f"s{sB}", f"s{sN}")
    p2, c2 = g.poll("f2", vPd, vPo, f"s{sB}", f"s{sN}", off=256)
    G1, G2 = CFG.get("g1", 366), CFG.get("g2", 548)
    add(G1 - 16, [p1]); add(G1, c1)
    E0 = 448
    streams.append((E0 + 3, E0 + CFG.get("e7", 46), epi(7)))
    add(E0 + CFG.get("e7", 46) + 24, flag(1, 7))
    add(G2 - 12, [p2]); add(G2, c2)
    hreg = lambda n: A + 224 + 4 * (n % 40) if n % 40 < 8 else A + 4 * (n % 40 - 8)
    add(G1 - 15, [f"s_xor_b32 s4, s{sRt}, 2", "s_mul_i32 s4, s4, 57344"])
    add(G1 - 14, [f"s_add_u32 s{sA}, s{sE}, s4", f"s_mul_i32 s4, s{sRt}, 57344"])
    add(G1 - 11, [f"s_add_u32 s{sE}, s{sE}, s4"])
    use = {}
    accs = [[64, 68, 72, 76], [96, 100, RES, RES + 4], [80, 84, 88, 92], [104, 108, RES + 8, RES + 12]]
    for es in range(4):
        order = [(e, c) for e in range(14) for c in range(4)] if es < 3 else \
                [(e, c) for b in range(2) for e in range(14) for c in (2 * b, 2 * b + 1)]
        for e, c in order:
            n = 14 * es + e
            use.setdefault(n, [len(mains), 0]); use[n][1] = len(mains)
            own = es % 2 == 1 and c >= 2
            mains.append(M16(accs[es][c], dreg(e) + 4 * c, hreg(n), "0" if e == 0 and not own else None))
    pace = CFG.get("epace", 4.4)
    for n in range(56):
        es, e = divmod(n, 14)
        gp = int(G1 + 2 + pace * n) if n < 28 else int(G2 + 1 + min(pace, CFG.get("epace2", 2.0)) * (n - 28))
        if 8 <= n < 40: gp = max(gp, 392 + 4 * ((n - 8) // 4) + 4)
        if n >= 40: assert gp > use[n - 40][1]
        assert gp < use[n][0] - 1, (n, gp, use[n])
        if e % 4 == 0: add(gp - 1, [f"s_add_u32 s5, s{sE if es % 2 else sA}, {(es//2)*4*57344+1024*e}"])
        add(gp, [f"buffer_load_dwordx4 {R(hreg(n),4)}, v{vL16}, {sr(SWS,4)}, s5 offen offset:{1024*(e%4)} sc1 ;#e{n}"])
        w = f"WAIT vm=e{n}" + (f" lg=w{e}" if es == 0 and e >= 6 else "")
        fx.setdefault(use[n][0] - 1, []).insert(0, w)
    for e in range(8, 14):
        streams.append((436 + 9 * (e - 8), 444 + 9 * (e - 8), (["WAIT vm=d13"] if e == 8 else []) + dconv(e)))
    RX, OP = 48, 112
    def xw(P, s, r): return [f"ds_write_b128 v{vMw+s}, {vr(r+4*c,4)} offset:{28672*P+1024*c} ;#x{P}" for c in range(2)]
    def xr(P):
        o = [f"ds_read_b128 {vr(RX+8*s+4*c,4)}, v{vMr} offset:{28672*P+2048*s+1024*c} ;#y{P}{s}" for s in range(3) for c in range(2)]
        o += [2, f"WAIT lg=y{P}1"] + [f"v_add_f32 v{RX+i}, v{RX+i}, v{RX+8+i}" for i in range(8)]
        return o + [f"WAIT lg=y{P}2"] + [f"v_add_f32 v{RX+i}, v{RX+i}, v{RX+16+i}" for i in range(8)]
    def fin(P, pk):
        r = RES + 8 * P
        if pk: o = [f"v_pk_add_f32 {vr(r+2*i,2)}, {vr(r+2*i,2)}, {vr(RX+2*i,2)}" for i in range(4)]
        else: o = [f"v_add_f32 v{r+i}, v{r+i}, v{RX+i}" for i in range(8)]
        o += [f"v_cvt_pk_bf16_f32 v{OP+i}, v{r+2*i}, v{r+2*i+1}" for i in (0, 2, 1, 3)]
        o += [f"s_add_u32 s4, s{sXr}, {64*896*P}"] + [f"v_permlane16_swap_b32 v{OP+i}, v{OP+2+i}" for i in range(2)]
        return o + [f"buffer_store_dwordx4 {vr(OP,4)}, v{vRM}, {sr(SOUT,4)}, s4 offen"]
    streams.append((E0 + 60, E0 + 72, xw(0, 0, 64) + xw(0, 1, 72)))
    streams.append((E0 + 116, E0 + 120, xw(0, 2, 96)))
    add(E0 + 128, ["WAIT lg=x0", "s_barrier"])
    streams.append((E0 + 129, E0 + 166, xr(0) + fin(0, False)))
    streams.append((E0 + 172, E0 + 184, xw(1, 0, 80) + xw(1, 1, 88)))
    streams.append((E0 + 199, E0 + 200, xw(1, 2, 104)))
    add(E0 + 206, ["WAIT lg=x1", "s_barrier"])
    streams.append((E0 + 207, E0 + 223, xr(1)))
    if CFG["stamps"]:
        add(447, g.stamp()); add(G2 + 1, g.stamp())
    over = weave(k, mains, fx, streams)
    if CFG["show"]: print("D/E overflow cycles", over)
    emit(k, fin(1, True))
```

```python
import sys, struct, math
from asmlib import *

NAME = "sequential_preLN__softmax_full_mha__glu_gated_glu__prompt_kernel"
S, D, H, DH, F = 2048, 448, 16, 28, 1792
KB, MB = 1024, 1 << 20
KV, HF, ST, FL, HH = 0, 512 * KB, 768 * KB, 800 * KB, MB
OG, NONCE, TS, WS_SIZE = 16 * MB, 18 * MB + 12, 20 * MB, 21 * MB
FT, FA, FC, FD = FL, FL + 128, FL + 768, FL + 1280
NINC = 0x9E3779B9
OOB = 0x40000000
LOG2E = math.log2(math.e)
SPIN = 1 << 16
BARS = (24, 30, 36, 42, 47, 53, 58)
def f32(x): return "0x%08x" % struct.unpack("<I", struct.pack("<f", x))[0]

CFG = dict(stamps=0, force_fallback=0, force_slow=0, upto=9, nup=4, ndef=4, rate=2.2, lat=7, bper=4, wstart=6,
           tspin=64, show=0, aflag=12, cflag=22)

SX, SWQ, SWO, SWG, SWD, SOUT, SWS, SWF, SWL = 8, 12, 16, 20, 24, 28, 32, 36, 40
sN, sR, sHI = 44, 45, 46
sP, sJ = 48, 49
sCNT = 63
A = 256
vL, vL16, vIDX = 1, 2, 3
vGs, vOs, vGa, vOa = 8, 12, 16, 20
vMw, vMr, vRM, vOst, vN, vF0 = 24, 27, 28, 29, 30, 31

def M32(d, a, b, c=None): return f"v_mfma_f32_32x32x16_bf16 {R(d,16)}, {R(a,4)}, {R(b,4)}, {R(d,16) if c is None else c}"
def SMF(d, a, b): return f"v_smfmac_f32_32x32x32_bf16 {R(d,16)}, {R(a,4)}, {R(b,8)}, v{vIDX}"
def M16(d, a, b, c=None): return f"v_mfma_f32_16x16x32_bf16 {R(d,4)}, {R(a,4)}, {R(b,4)}, {R(d,4) if c is None else c}"
def M4(d, a, b, c=None): return f"v_mfma_f32_4x4x4_16b_bf16 {R(d,4)}, {R(a,2)}, {R(b,2)}, {R(d,4) if c is None else c}"

def lanes(dst, terms, tmp, add=None):
    o = []; first = True
    for lo, w, mul in terms:
        if lo == 0 and w >= 6: src = f"v{vL}"
        else:
            src = f"v{tmp}"
            if lo == 0: o.append(f"v_and_b32 {src}, {(1 << w) - 1}, v{vL}")
            elif lo + w >= 6: o.append(f"v_lshrrev_b32 {src}, {lo}, v{vL}")
            else: o.append(f"v_bfe_u32 {src}, v{vL}, {lo}, {w}")
        p2 = mul & (mul - 1) == 0; sh = mul.bit_length() - 1
        if first:
            o.append(f"v_lshlrev_b32 v{dst}, {sh}, {src}" if p2 else f"v_mul_u32_u24 v{dst}, {mul}, {src}")
        elif p2: o.append(f"v_lshl_add_u32 v{dst}, {src}, {sh}, v{dst}")
        else: o += [f"v_mul_u32_u24 v{tmp}, {mul}, {src}", f"v_add_u32 v{dst}, v{dst}, v{tmp}"]
        first = False
    if add is not None: o.append(f"v_add_u32 v{dst}, {add}, v{dst}")
    return o

def cost(s):
    if s.startswith(("v_exp", "v_rcp", "v_rsq")): return 8
    if s.startswith(("s_", "WAIT")) or s.endswith(":"): return 0
    return 4

def emit(k, lst):
    for s in lst: k(s)

def weave(k, mains, fixed, streams, cap=8):
    st = []
    for g0, g1, items in streams:
        c = lambda it: 0 if isinstance(it, int) else (sum(cost(x) for x in it) if isinstance(it, tuple) else cost(it))
        st.append(dict(g0=g0, g1=g1, it=list(items), tot=sum(c(x) for x in items), done=0, hold=0, c=c))
    over = 0
    for g, m in enumerate(mains):
        k(m)
        room = cap; nscal = 0
        def put(s):
            nonlocal room, nscal
            k(s)
            c = cost(s)
            if c == 0 and not s.endswith(":"):
                if nscal or room < cap: room -= 4
                nscal += 1
            room -= c
        for s in fixed.get(g, []): put(s)
        for t in st:
            while t["it"] and g >= t["g0"] and g >= t["hold"]:
                it = t["it"][0]
                if isinstance(it, int):
                    t["hold"] = g + it; t["it"].pop(0); continue
                c = t["c"](it)
                if g < t["g1"]:
                    need = c if c else (4 if (nscal or room < cap) else 0)
                    if isinstance(it, tuple): need = min(need, cap)
                    if room < need: break
                    if t["done"] * (t["g1"] - t["g0"] + 1) > t["tot"] * (g - t["g0"] + 1): break
                t["it"].pop(0); t["done"] += c
                for s in (it if isinstance(it, tuple) else (it,)): put(s)
        if room < 0: over -= room
    for t in st: assert not t["it"], t["it"]
    return over

class Gen:
    def __init__(self):
        self.k = Kernel(NAME, 256, 256, 160 * KB, nvgpr=512, nsgpr=102)
        self.nst = 0; self.tail = []
    def stamp(self):
        if not CFG["stamps"]: return []
        i = self.nst; self.nst += 1; assert i < 15
        return [f"s_memrealtime s[{64+2*i}:{65+2*i}]"]
    def st2(self, op, data, voff, soff, off=0, tag="st"):
        return [f"{op} {data}, v{voff}, {sr(SWF,4)}, {soff} offen offset:{off} ;#{tag}",
                f"{op} {data}, v{voff}, {sr(SWL,4)}, {soff} offen offset:{off} sc1 ;#{tag}"]
    def poll(self, name, vd, voff, soff, sexp, limit=SPIN, off=0):
        k = self.k
        ld = f"buffer_load_dword v{vd}, v{voff}, {sr(SWS,4)}, {soff} offen offset:{off} sc1"
        chk = [f"s_mov_b32 s{sCNT}, {limit}", f"WAIT vm={name}", k.L(name + "c") + ":",
               f"v_cmp_ne_u32 vcc, {sexp}, v{vd}", f"s_cbranch_vccz {k.L(name + 'd')}",
               ld + " ;#nc", f"s_sub_u32 s{sCNT}, s{sCNT}, 1", "WAIT vm=0",
               f"s_cbranch_scc0 {k.L(name + 'c')}", k.L(name + "d") + ":"]
        return ld + f" ;#{name}", chk

    def phase_a(self):
        k = self.k
        k("s_cmp_ge_u32 s2, 256")
        k(f"s_cbranch_scc1 {k.L('exit')}")
        for b, off in ((SX, 0), (SWQ, 8), (SWS, 72), (SWO, 16), (SWG, 32), (4, 40), (SWD, 48), (SOUT, 56)):
            k(f"s_load_dwordx2 {sr(b,2)}, s[0:1], {off}")
        emit(k, self.stamp())
        if CFG["stamps"]: k("s_memtime s[96:97]")
        k("v_readfirstlane_b32 s3, v0")
        k(f"v_and_b32 v{vL}, 63, v0")
        k("s_and_b32 s6, s2, 7\ns_lshr_b32 s7, s2, 3\ns_lshr_b32 s3, s3, 6")
        k(f"s_and_b32 s{sP}, s7, 1\ns_lshr_b32 s{sJ}, s7, 1\ns_lshl_b32 s{sR}, s6, 21")
        for b, n in ((SX, S * D * 2), (SWQ, D * 3 * D * 2), (SWS, WS_SIZE)):
            k(f"s_mov_b32 s{b+2}, {n}\ns_mov_b32 s{b+3}, 0x20000")
        sXo, sWo, sQo, sXl, sWl, sKo, sTile, sT = 50, 51, 52, 53, 54, 55, 62, 61
        XB, QX = 64 * KB, 56 * KB
        k(f"s_lshl_b32 s{sTile}, s{sJ}, 2\ns_add_u32 s{sTile}, s{sTile}, s3")
        k(f"s_mul_i32 s{sXo}, s{sTile}, {32*896}")
        k(f"s_mul_i32 s{sQo}, s3, {16*2688}\ns_mul_i32 s{sWo}, s6, 112\ns_add_u32 s{sQo}, s{sQo}, s{sWo}")
        k(f"s_mul_i32 s{sWo}, s{sP}, 896\ns_add_u32 s{sWo}, s{sWo}, s{sQo}\ns_add_u32 s{sWo}, s{sWo}, 896")
        k(f"s_mul_i32 s{sXl}, s{sP}, 48\ns_add_u32 s{sQo}, s{sQo}, s{sXl}")
        k(f"s_mul_i32 s{sXl}, s3, {24*KB}\ns_add_u32 s{sXl}, s{sXl}, {XB}")
        k(f"s_lshl_b32 s{sWl}, s3, 11")
        vXs, vWs, vQs, vXa, vWa, vQa = 208, 212, 214, 216, 220, 228
        vPT, vTl, vT, vRstd, vRr, vRw, vNM = 232, 233, 234, 235, 236, 237, 238
        k(f"v_lshrrev_b32 v4, 3, v{vL}\nv_lshrrev_b32 v5, 4, v{vL}\nv_and_b32 v6, 7, v{vL}")
        k("v_mul_u32_u24 v7, 896, v4")
        k("v_xor_b32 v5, v5, v6")
        k(f"v_lshl_add_u32 v{vXs}, v5, 4, v7")
        k("v_xor_b32 v5, 4, v5")
        k(f"v_lshl_add_u32 v{vXs+1}, v5, 4, v7")
        k(f"v_add_u32 v{vXs+2}, {2*6144}, v{vXs}")
        k(f"v_add_u32 v{vXs+3}, {3*6144}, v{vXs+1}")
        k(f"v_add_u32 v{vXs+1}, 6144, v{vXs+1}")
        k(f"v_lshrrev_b32 v5, 2, v{vL}\nv_and_b32 v5, 4, v5\nv_xor_b32 v5, v5, v6\nv_min_u32 v5, 6, v5")
        k("v_mul_u32_u24 v7, 2688, v4")
        k(f"v_lshl_add_u32 v{vWs}, v5, 4, v7")
        k(f"v_add_u32 v{vWs+1}, {8*2688-1024}, v{vWs}")
        k(f"s_add_u32 s{sT}, s{sR}, {FL-128}")
        k(f"v_lshl_add_u32 v4, v{vL}, 7, s{sT}")
        k("s_cmp_eq_u32 s3, 0\ns_cselect_b32 s56, 19, 0")
        k(f"v_cmp_gt_u32 vcc, s56, v{vL}")
        k(f"v_mov_b32 v5, {OOB}")
        k("v_cndmask_b32 v4, v5, v4, vcc")
        k(f"v_cmp_eq_u32 vcc, 0, v{vL}")
        k(f"v_mov_b32 v6, {NONCE}")
        k("v_cndmask_b32 v4, v4, v6, vcc")
        k(f"v_cndmask_b32 v{vF0}, v5, 0, vcc")
        xslot = lambda g: g % 6
        def dma_x(g):
            o = [f"s_add_u32 m0, s{sXl}, {xslot(g)*4096}", f"s_add_u32 s56, s{sXo}, {g*128}"]
            return o + [f"buffer_load_dwordx4 v{vXs+i}, {sr(SX,4)}, s56 offen offset:{1024*i} lds ;#a{g}" for i in range(4)]
        def dma_w(g):
            o = [f"s_add_u32 m0, s{sWl}, {g*8192}", f"s_add_u32 s57, s{sWo}, {g*64*2688}"]
            return o + [f"buffer_load_dwordx4 v{vWs+i}, {sr(SWQ,4)}, s57 offen offset:{1024*i} lds ;#a{g}" for i in range(2)]
        def dma_q(g):
            return [f"s_add_u32 m0, s{sXl}, {4096+g*1024}", f"s_add_u32 s57, s{sQo}, {g*64*2688}",
                    f"buffer_load_dwordx4 v{vQs}, {sr(SWQ,4)}, s57 offen lds ;#q{g}"]
        NUP = CFG["nup"]
        k("s_waitcnt lgkmcnt(0)")
        k(f"buffer_load_dword v{vN}, v4, {sr(SWS,4)}, 0 offen sc1 ;#nonce")
        for g in range(NUP): emit(k, dma_x(g) + dma_w(g))
        emit(k, self.stamp())
        k("s_bitcmp1_b32 s3, 0")
        k(f"s_cselect_b32 s{SWG}, s4, s{SWG}\ns_cselect_b32 s{SWG+1}, s5, s{SWG+1}")
        k("s_cmp_lt_u32 s7, 28")
        for b, n in ((SWO, D * D * 2), (SWG, D * F * 2), (SWD, F * D * 2)):
            k(f"s_cselect_b32 s{b+2}, {n}, 0\ns_mov_b32 s{b+3}, 0x20000")
        k(f"s_mov_b32 s{SOUT+2}, {S*D*2}\ns_mov_b32 s{SOUT+3}, 0x20000")
        for b in (SWF, SWL):
            k(f"s_mov_b32 s{b}, s{SWS}\ns_mov_b32 s{b+1}, s{SWS+1}\ns_mov_b32 s{b+2}, 0\ns_mov_b32 s{b+3}, 0x20000")
        k(f"s_mov_b32 s{sHI}, 0\ns_mov_b32 s{sHI+1}, -1")
        k(f"s_lshl_b32 s{sKo}, s{sTile}, 12\ns_lshl_b32 s4, s{sP}, 11\ns_add_u32 s{sKo}, s{sKo}, s4\ns_add_u32 s{sKo}, s{sKo}, s{sR}")
        k(f"v_lshlrev_b32 v{vL16}, 4, v{vL}")
        emit(k, lanes(vQs, [(2, 4, 2688), (0, 2, 16)], 4))
        emit(k, lanes(4, [(0, 5, 128)], 5, f"s{sXl}"))
        k(f"v_lshrrev_b32 v5, 5, v{vL}\nv_bfe_u32 v6, v{vL}, 1, 3\nv_xor_b32 v5, v5, v6")
        emit(k, lanes(6, [(2, 2, 1), (5, 1, 8)], 7))
        emit(k, lanes(7, [(4, 1, 32), (0, 2, 8)], 0))
        emit(k, lanes(vPT, [(3, 1, 64)], 0))
        k(f"v_xor_b32 v{vT}, v7, v{vPT}\nv_lshl_add_u32 v{vT}, v6, 7, v{vT}")
        k(f"v_add_u32 v{vTl}, 56, v7\nv_xor_b32 v{vTl}, v{vTl}, v{vPT}\nv_lshl_add_u32 v{vTl}, v6, 7, v{vTl}")
        k(f"s_lshl_b32 s4, s{sP}, 3\ns_add_u32 s4, s4, {XB+4096}")
        k("v_lshl_add_u32 v6, v6, 6, v7")
        self.vTr = 239
        k(f"v_add_u32 v{self.vTr}, s{sXl}, v6")
        k("v_add_u32 v6, s4, v6")
        for p in range(4):
            k(f"s_add_u32 s4, s3, {p}\ns_and_b32 s4, s4, 3\ns_lshl_b32 s5, s4, 1")
            k("v_xor_b32 v7, s5, v5")
            k(f"s_lshl_b32 s5, s4, 11\ns_mul_i32 s4, s4, {24*KB}")
            k(f"v_lshl_add_u32 v{vXa+p}, v7, 4, v4")
            k(f"v_add_u32 v{vWa+2*p}, s5, v{vT}\nv_add_u32 v{vWa+2*p+1}, s5, v{vTl}")
            k(f"v_add_u32 v{vQa+p}, s4, v6")
        emit(k, lanes(vPT, [(0, 4, 128), (4, 1, 256 * KB), (5, 1, OOB)], 4))
        emit(k, lanes(vTl, [(0, 5, 4)], 4))
        ACC, ACQ, XF, WF = 32, 64, A, A + 112
        SQ, RS, CSA, RT = 144, 152, 156, 164
        PK, SEL, AUGA, AUGB, CSQ = 176, 192, 196, 204, 240
        k(f"v_lshrrev_b32 v4, 2, v{vL}\nv_xor_b32 v4, v4, v{vL}\nv_and_b32 v4, 4, v4")
        k("v_cmp_eq_u32 vcc, 0, v4")
        k("v_mov_b32 v4, 0x3f803f80")
        k(f"v_cndmask_b32 v{SEL}, 0, v4, vcc")
        for i in range(1, 4): k(f"v_mov_b32 v{SEL+i}, v{SEL}")
        for r in (AUGA + 1, AUGA + 3, AUGA + 4, AUGA + 5, AUGA + 6, AUGA + 7, AUGB + 1, AUGB + 2, AUGB + 3): k(f"v_mov_b32 v{r}, 0")
        k(f"v_lshlrev_b32 v{vRr}, 2, v{vL}")
        k(f"s_lshl_b32 s4, s3, 9\nv_add_u32 v{vRw}, s4, v{vRr}")
        self.setup_b()
        k.tag = "akv"
        def reads(n):
            g, p = divmod(n, 4)
            o = [f"ds_read_b128 {R(XF+4*n,4)}, v{vXa+p} offset:{xslot(g)*4096} ;#r{n}"]
            for u in range(2):
                for h in range(2):
                    o.append(f"ds_read_b64_tr_b16 {R(WF+8*(n%8)+4*u+2*h,2)}, v{vWa+2*p+u} offset:{g*8192+h*512} ;#r{n}")
            return o
        tld, tchk = self.poll("tp", vT, vTl, "s56", f"s{sT}", CFG["tspin"])
        late = {g: [] for g in range(7)}
        for g in range(NUP, 7): late[max(g - NUP, 1 if g == 6 else 0)] += dma_x(g) + dma_w(g)
        g0 = max(7 - NUP, 3)
        late[7 - NUP] += [f"buffer_load_dword v0, v{vPT}, {sr(SWS,4)}, s{sKo} offen sc1 ;#pt"]
        for g in range(7): late[g0 + g // 4] += dma_q(g)
        late[6] += [f"s_add_u32 s56, s{sR}, {FT}", tld]
        k("WAIT vm=a0")
        k("s_barrier")
        emit(k, self.stamp())
        rq = reads(0) + reads(1) + reads(2) + reads(3)
        emit(k, rq[:10]); rq = rq[10:]
        k(f"v_readfirstlane_b32 s{sN}, v{vN}")
        k(f"s_getreg_b32 s{sT}, hwreg(HW_REG_XCC_ID, 0, 4)")
        k(f"s_add_u32 s{sN}, s{sN}, {hex(NINC)}\ns_add_u32 s{sT}, s{sT}, s{sN}")
        k(f"s_lshl_b32 s4, s7, 2\ns_add_u32 s4, s4, s{sR}\ns_add_u32 s4, s4, {FT}")
        k(f"v_mov_b32 v4, s{sT}\nv_mov_b32 v{vN}, s{sN}")
        k(f"buffer_store_dword v4, v{vF0}, {sr(SWS,4)}, s4 offen")
        lq = []
        for n in range(28):
            g, p = divmod(n, 4)
            x, w = XF + 4 * n, WF + 8 * (n % 8)
            z = "0" if n == 0 else None
            big = [M32(ACC + 16 * u, w + 4 * u, x, z) for u in range(2)]
            small = [M16(RS, SEL, x, z), M4(SQ, x, x, z), M4(SQ + 4, x + 2, x + 2, z)]
            if p == 0: small += [M16(CSA + 4 * u, SEL, w + 4 * u, z) for u in range(2)]
            seq = small + big if n == 27 else big[:1] + small + big[1:]
            if p == 0: lq += late[g]
            k(f"WAIT lg=r{n}")
            for i, s in enumerate(seq):
                k(s)
                isbig = "32x32" in s
                if i == 0 and p == 3 and g < 6:
                    assert not rq
                    emit(k, lq); lq = []
                    k(f"WAIT vm=a{g+1}\ns_barrier")
                    for m in range(n + 1, n + 5): rq += reads(m)
                if i == 0 and n == 26:
                    k("WAIT lg=redw\ns_barrier")
                    rq += [f"ds_read_b32 v{RT+4*u+j}, v{vRr} offset:{QX+512*j+256*u} ;#redr" for u in range(2) for j in range(4)]
                m = 5 if isbig else 1
                emit(k, rq[:m]); rq = rq[m:]
                if isbig:
                    while lq:
                        t = lq.pop(0); k(t)
                        if t.startswith("buffer"): break
                if n == 25 and i == len(seq) - 1:
                    emit(k, [f"ds_write_b32 v{vRw}, v{CSA+4*u} offset:{QX+256*u} ;#redw" for u in range(2)])
                if n == 27 and isbig:
                    u = i - len(small); c = RT + 4 * u
                    if u == 0: k("WAIT lg=redr")
                    emit(k, self.aug(c, AUGA + 2 * u))
        assert not rq and not lq
        k.tag = "aepi"
        k("s_mov_b32 s50, 0x22222222\ns_mov_b32 s51, 0x22222222")
        k("s_mov_b32 s58, 0x44444444\ns_mov_b32 s59, 0x44444444\ns_mov_b32 s4, 0x88888888\ns_mov_b32 s5, 0x88888888")
        k(f"v_mul_f32 v{vNM}, {f32(-1.0/D)}, v{RS}")
        k(f"v_cvt_pk_bf16_f32 v4, v{vNM}, v{vNM}\nv_and_b32 v4, 0xffff0000, v4\nv_sub_f32 v4, v{vNM}, v4")
        k(f"v_cvt_pk_bf16_f32 v{AUGB}, v{vNM}, v4")
        for i in range(2): k(f"v_add_f32 v{SQ+i}, v{SQ+i}, v{SQ+4+i}")
        k(M32(ACC, AUGA, AUGB))
        for i in range(2, 4): k(f"v_add_f32 v{SQ+i}, v{SQ+i}, v{SQ+4+i}")
        for i, sm in enumerate((50, 58, 4)): k(f"v_cndmask_b32 v{SQ}, v{SQ}, v{SQ+1+i}, s[{sm}:{sm+1}]")
        k(f"v_mov_b32 v4, v{SQ}")
        k(M32(ACC + 16, AUGA + 2, AUGB))
        k(f"v_mul_f32 v5, v{vNM}, v{vNM}")
        k(f"v_permlane32_swap_b32 v4, v{SQ}")
        k(f"v_add_f32 v4, v4, v{SQ}")
        k(f"v_mov_b32 v6, {f32(1.0/D)}")
        k("v_fma_f32 v4, v4, v6, -v5")
        k("v_max_f32 v4, 0, v4")
        k(f"v_add_f32 v4, {f32(1e-5)}, v4")
        k("v_rsq_f32 v4, v4")
        emit(k, lanes(6, [(0, 5, 64), (5, 1, 16)], 7, f"s{sXl}"))
        k(f"v_mul_f32 v{vRstd}, {f32(DH ** -0.5 * LOG2E)}, v4")
        def pack(a, pk, pads):
            for i in range(8): k(f"v_pk_mul_f32 {vr(a+2*i,2)}, {vr(a+2*i,2)}, v[4:5] op_sel_hi:[1,0]")
            for i in range(4): k(f"v_cndmask_b32 v{a+12+i}, v{a+12+i}, {pads[i]}, s[{sHI}:{sHI+1}]")
            for c in range(4):
                k(f"v_cvt_pk_bf16_f32 v{pk+2*c}, v{a+c}, v{a+4+c}")
                k(f"v_cvt_pk_bf16_f32 v{pk+2*c+1}, v{a+8+c}, v{a+12+c}")
        for u in range(2): pack(ACC + 16 * u, PK + 8 * u, ("1.0", "1.0", "0", "0"))
        k(f"s_cmp_eq_u32 s{sP}, 0")
        k(f"s_cbranch_scc1 {k.L('notr')}")
        for u in range(2):
            for s in range(2): k(f"ds_write_b128 v6, {vr(PK+8*u+4*s,4)} offset:{3*4096+2048*u+32*s} ;#nc")
        k("WAIT lg=0")
        for u in range(2):
            for s in range(2):
                for h in range(2):
                    k(f"ds_read_b64_tr_b16 {vr(PK+8*u+4*s+2*h,2)}, v{self.vTr} offset:{3*4096+2048*u+1024*s+256*h} ;#nc")
        k.label("notr")
        emit(k, tchk)
        k("s_cmp_eq_u64 vcc, 0")
        fs = CFG["force_slow"]
        k(f"s_cselect_b32 s{SWF+2}, {0 if fs else WS_SIZE}, 0\ns_cselect_b32 s{SWL+2}, {WS_SIZE if fs else 0}, {WS_SIZE}")
        k(f"s_add_u32 s4, s{sKo}, {256*KB}")
        k("WAIT lg=0")
        for u in range(2):
            for s in range(2): emit(k, self.st2("buffer_store_dwordx4", vr(PK + 8 * u + 4 * s, 4), vL16, f"s{sKo}" if u == 0 else "s4", 1024 * s, "kv"))
        emit(k, self.stamp())
        k.tag = "aq"
        def qreads(n):
            g, p = divmod(n, 4)
            return [f"ds_read_b64_tr_b16 {R(WF+4*(n%16)+2*h,2)}, v{vQa+p} offset:{g*1024+h*256} ;#s{n}" for h in range(2)]
        k("WAIT vm=q3\ns_barrier")
        RA = 4
        for n in range(RA): emit(k, qreads(n))
        k(f"s_lshl_b32 s4, s7, 4\ns_lshl_b32 s5, s3, 2\ns_add_u32 s4, s4, s5\ns_add_u32 s4, s4, s{sR}\ns_add_u32 s4, s4, {FA}")
        k(f"s_lshl_b32 s5, s3, 7\ns_add_u32 s5, s5, s{sR}\ns_add_u32 s5, s5, {FA}")
        pld, pchk = self.poll("fa", vT, vTl, "s5", f"s{sN}")
        for n in range(28):
            g, p = divmod(n, 4)
            z = "0" if n == 0 else None
            k(f"WAIT lg=s{n}")
            k(M32(ACQ, WF + 4 * (n % 16), XF + 4 * n, z))
            if n + RA == 16: k("WAIT vm=q6\ns_barrier")
            if n + RA < 28: emit(k, qreads(n + RA))
            if p == 0: k(M16(CSQ, SEL, WF + 4 * (n % 16), z))
            if n == CFG["aflag"]:
                k("WAIT vm=kv")
                emit(k, self.st2("buffer_store_dword", f"v{vN}", vF0, "s4", 0, "fl"))
            if n == 25: k(f"ds_write_b32 v{vRw}, v{CSQ} ;#qrw")
            if n == 26:
                k("WAIT lg=qrw\ns_barrier")
                emit(k, [f"ds_read_b32 v{CSQ+4+j}, v{vRr} offset:{512*j} ;#qrr" for j in range(4)])
                k(pld)
        k("WAIT lg=qrr")
        emit(k, self.aug(CSQ + 4, AUGA + 4))
        k(f"v_mov_b32 v4, v{vRstd}")
        k(M32(ACQ, AUGA + 4, AUGB))
        k(f"s_lshl_b32 s4, s3, 11\ns_add_u32 s4, s4, {QX}")
        k(f"v_add_u32 v6, s4, v{vL16}")
        pack(ACQ, PK, ("0", "0", "0", "0"))
        for s in range(2): k(f"ds_write_b128 v6, {vr(PK+4*s,4)} offset:{1024*s} ;#qxw")
        emit(k, self.stamp())
        emit(k, pchk)
        emit(k, self.stamp())

    def aug(self, c, dst):
        return [f"v_add_f32 v{c}, v{c}, v{c+1}", f"v_add_f32 v{c+2}, v{c+2}, v{c+3}", f"v_add_f32 v{c}, v{c}, v{c+2}",
                f"v_cvt_pk_bf16_f32 v{c+1}, v{c}, v{c}", f"v_and_b32 v{c+2}, 0xffff0000, v{c+1}", f"v_sub_f32 v{c}, v{c}, v{c+2}",
                f"v_cvt_pk_bf16_f32 v{c}, v{c}, v{c}", f"v_cndmask_b32 v{dst}, v{c+1}, v{c}, s[{sHI}:{sHI+1}]"]

    def setup_b(self):
        k = self.k
        k(f"v_mov_b32 v{vIDX}, 0xdddd")
        for r in range(80, 144): k(f"v_mov_b32 v{r}, 0")
        k(f"v_lshrrev_b32 v4, 3, v{vL}\nv_and_b32 v5, 6, v4\nv_and_b32 v6, 7, v{vL}\nv_xor_b32 v5, v5, v6")
        k(f"v_mul_u32_u24 v7, 3584, v4\nv_lshl_add_u32 v{vGs}, v5, 4, v7")
        for i in range(1, 4): k(f"v_add_u32 v{vGs+i}, {i*(8*3584-1024)}, v{vGs}")
        k("v_mul_u32_u24 v7, 896, v4")
        for i in range(4):
            k(f"s_lshl_b32 s4, s3, 2\ns_add_u32 s4, s4, {2*i}")
            k("v_subrev_u32 v5, s4, v6\nv_and_b32 v5, 7, v5\nv_lshl_add_u32 v5, v5, 4, v7")
            k(f"v_add_u32 v{vOs+i}, {i*6144}, v5")
        emit(k, lanes(4, [(2, 4, 128), (0, 2, 8), (3, 2, 32)], 5))
        k(f"s_and_b32 s4, s3, 1\ns_lshl_b32 s4, s4, 6\ns_lshr_b32 s5, s3, 1\ns_lshl_b32 s5, s5, 13\ns_add_u32 s5, s5, {64*KB}")
        k(f"v_xor_b32 v4, s4, v4\nv_add_u32 v{vGa}, s5, v4\nv_xor_b32 v{vGa+1}, 32, v{vGa}")
        for i in range(2): k(f"v_add_u32 v{vGa+2+i}, {48*KB}, v{vGa+i}")
        emit(k, lanes(4, [(4, 2, 128), (2, 2, 1024), (0, 2, 8)], 5))
        k(f"s_and_b32 s4, s3, 1\ns_mul_i32 s5, s4, {224*128}\ns_lshl_b32 s4, s4, 1")
        k(f"v_add_u32 v4, s5, v4\nv_bfe_u32 v5, v{vL}, 2, 2\nv_add_u32 v5, s4, v5")
        for r in range(4):
            k(f"v_add_u32 v6, {r+2}, v5\nv_and_b32 v6, 3, v6\nv_lshl_add_u32 v{vOa+r}, v6, 5, v4")
        for s in range(3):
            k(f"s_xor_b32 s4, s3, {s^3}\ns_mul_i32 s4, s4, 12288\ns_add_u32 s4, s4, {112*KB+4096*s}")
            k(f"v_add_u32 v{vMw+s}, s4, v{vL16}")
        k(f"s_mul_i32 s4, s3, 12288\ns_add_u32 s4, s4, {112*KB}\nv_add_u32 v{vMr}, s4, v{vL16}")
        emit(k, lanes(vRM, [(0, 4, 896), (4, 1, 32), (5, 1, 16)], 4))
        emit(k, lanes(vOst, [(0, 4, 16), (4, 1, 16384), (5, 1, 256)], 4))

    def phase_b(self):
        k = self.k
        k.tag = "b"
        SB, O, KVB, Q, XR = 32, 80, 144, A + 224, 240
        NR = 6
        sKV, sG, sWo, sGl, sOl, sXr, sH = 50, 51, 52, 53, 54, 55, 56
        self.sXr = sXr
        k(f"s_lshl_b32 s{sH}, s{sP}, 18\ns_add_u32 s{sH}, s{sH}, s{sR}")
        k(f"s_lshl_b32 s{sKV}, s3, 16\ns_add_u32 s{sKV}, s{sKV}, s{sH}")
        def kvload(t):
            o = [f"buffer_load_dwordx4 {vr(KVB+16*(t%NR)+4*i,4)}, v{vL16}, {sr(SWS,4)}, s{sKV} offen offset:{1024*i} sc1 ;#{'kv'[i//2]}{t}" for i in range(4)]
            o[3] = (o[3], f"s_add_u32 s{sKV}, s{sKV}, 4096")
            return o
        flat = lambda l: [y for x in l for y in (x if isinstance(x, tuple) else (x,))]
        UP = 2
        for t in range(UP): emit(k, flat(kvload(t)))
        k("WAIT lg=qxw\ns_barrier")
        k(f"v_xor_b32 v6, {3*2048}, v6")
        for s in range(4):
            if s: k(f"v_xor_b32 v7, {s*2048}, v6")
            for i in range(2): k(f"ds_read_b128 {R(Q+8*s+4*i,4)}, v{7 if s else 6} offset:{1024*i} ;#Q{s}")
        k(f"s_lshl_b32 s{sG}, s{sJ}, 8\ns_lshr_b32 s4, s3, 1\ns_lshl_b32 s4, s4, 7\ns_add_u32 s{sG}, s{sG}, s4")
        k(f"s_lshr_b32 s4, s{sJ}, 1\ns_lshl_b32 s4, s4, 7\ns_mul_i32 s{sWo}, s3, {112*896}\ns_add_u32 s{sWo}, s{sWo}, s4")
        k(f"s_lshl_b32 s{sGl}, s3, 12\ns_add_u32 s{sGl}, s{sGl}, {64*KB}\ns_mul_i32 s{sOl}, s3, 14336")
        k(f"s_lshl_b32 s{sXr}, s6, 4\ns_lshl_b32 s5, s{sP}, 3\ns_add_u32 s{sXr}, s{sXr}, s5")
        k(f"s_and_b32 s5, s{sJ}, 1\ns_add_u32 s{sXr}, s{sXr}, s5\ns_and_b32 s5, s3, 2\ns_add_u32 s57, s{sXr}, s5")
        k(f"s_mul_i32 s{sXr}, s57, {16*896}\ns_add_u32 s{sXr}, s{sXr}, s4")
        k(f"s_and_b32 s5, s3, 1\ns_lshl_b32 s5, s5, 6\ns_add_u32 s{sXr}, s{sXr}, s5")
        self.sRt = 57
        ND = CFG["ndef"]
        steps = [(t, s) for t in range(16 - ND) for s in range(4)]
        steps += [(t, s) for t in range(16 - ND, 16) for s in range(3)] + [(t, 3) for t in range(16 - ND, 16)]
        first = {}; last = {}; lasts = {}
        for n, (t, s) in enumerate(steps):
            first.setdefault(t, n); last[t] = n; lasts[s] = n
        gslot = lambda u: (u + 1) % 6
        def gdma(u):
            o = [f"buffer_load_dwordx4 v{vGs+i}, {sr(SWG,4)}, s{sG} offen offset:{1024*i} lds ;#g{u}" for i in range(4)]
            o[3] = (o[3], f"s_add_u32 s{sG}, s{sG}, {32*3584}")
            return [f"s_add_u32 m0, s{sGl}, {gslot(u)*16384}"] + o
        def odma(u):
            o = [f"buffer_load_dwordx4 v{vOs+i}, {sr(SWO,4)}, s{sWo} offen offset:{1024*i} lds ;#wo" for i in range(4 if u < 3 else 2)]
            o[-1] = (o[-1], f"s_add_u32 s{sWo}, s{sWo}, {32*896}")
            return [f"s_add_u32 m0, s{sOl}, {u*4096}"] + o
        def gconv(u):
            sl = gslot(u)
            return [f"ds_read_b64_tr_b16 {R(A+16*u+4*c+2*h,2)}, v{vGa+2*(sl//3)+(c&1)} offset:{(sl%3)*16384+(c>>1)*4096+h*2048} ;#c{u}"
                    for c in range(4) for h in range(2)]
        self.gconv = gconv
        fill = {}
        kvq = [(t, x) for t in range(UP, 16) for x in kvload(t)]
        xrl = [f"s_add_u32 s4, s{sXr}, {64*896}"] + \
              [f"buffer_load_dwordx4 {vr(XR+4*a,4)}, v{vRM}, {sr(SX,4)}, {'s4' if a else f's{sXr}'} offen ;#xr" for a in range(2)]
        order = [("g", u) for u in range(11)] + [("o", 0), ("g", 11), ("o", 1), ("g", 12), ("o", 2), ("g", 13), ("o", 3), ("x", 0)]
        units = [(kind, u, gdma(u) if kind == "g" else odma(u) if kind == "o" else xrl) for kind, u in order]
        armed = False
        issued = {}; readable = 0; convq = []; conv_done = {}; freed = 0; tokens = 0.0; lastbar = -99
        mq = []; mw0 = lasts[0] + 2
        waitgap = {first[t] - 2: t for t in range(1, 16)}
        log = []
        for n in range(64):
            for g in range(4):
                f = fill.setdefault((n, g), [])
                tokens = min(tokens + CFG["rate"] / 4, 1.9)
                pos = 4 * n + g
                if g == 3 and n in waitgap: f.append(f"WAIT vm=v{waitgap[n]}")
                if g == 3 and n < 2: f.append(f"WAIT lg=Q{n+2}")
                if g == 2 and n == 0: f.append("WAIT vm=v0")
                if g == 0 and n < mw0:
                    newr = readable
                    while newr in issued and issued[newr] + 4 * CFG["lat"] <= pos: newr += 1
                    newf = freed
                    pend = {u for u, _ in convq}
                    while newf < readable and newf not in pend and pos - conv_done[newf] >= 3: newf += 1
                    if n in BARS:
                        w = "WAIT" + (f" vm=g{newr-1}" if newr > readable else "") + (f" lg=c{newf-1}" if newf > freed else "")
                        f += [w, "s_barrier"]
                        log.append(f"step {n}: barrier readable {readable}->{newr} freed {freed}->{newf}")
                        freed = newf
                        for u in range(readable, newr): convq += [(u, x) for x in gconv(u)]
                        readable = newr; lastbar = n
                        continue
                if n >= mw0:
                    s = n - mw0
                    if s < 3:
                        assert freed > 10, "\n".join(log)
                        f.append(f"ds_write_b128 v{vMw+s}, {vr(O+16*s+4*g,4)} offset:{1024*g} ;#mw")
                    elif s == 3 and g == 1:
                        f += ["WAIT lg=mw", "s_barrier"]
                        mq = [f"ds_read_b128 {vr(O+16*j+4*i,4)}, v{vMr} offset:{4096*j+1024*i} ;#mr{i}" for i in (1, 0, 2, 3) for j in range(3)]
                    elif mq:
                        f += mq[:2]; mq = mq[2:]
                fresh = False
                if units and not armed:
                    f.insert(0, units[0][2].pop(0)); armed = fresh = True
                if convq and n < mw0:
                    u, x = convq.pop(0); f.append(x); conv_done[u] = pos; fresh = False
                if tokens >= 1:
                    if kvq and (kvq[0][0] < NR or pos > 4 * (last[kvq[0][0] - NR] + 1) + 2):
                        f += flat([kvq.pop(0)[1]]); tokens -= 1
                    elif n >= CFG["wstart"] and units and not fresh:
                        kind, u, cur = units[0]
                        if kind != "g" or u - 6 < freed:
                            f += flat([cur.pop(0)]); tokens -= 1
                            if not cur:
                                if kind == "g": issued[u] = pos
                                log.append(f"step {n}: unit {kind}{u} issued")
                                units.pop(0); armed = False
        if CFG["show"]: print("\n".join(log)); print("left conv", len(convq), "readable", readable)
        assert not kvq and not units, (len(kvq), units)
        kreg = lambda t: KVB + 16 * (t % NR)
        k("WAIT vm=k0 lg=Q0")
        k(M32(SB, kreg(0), Q, "0")); k(M32(SB, kreg(0) + 4, Q + 4))
        k("WAIT lg=Q1")
        emit(k, self.stamp())
        for n, (t, s) in enumerate(steps):
            cu, nx, pv = SB + 16 * (n % 3), SB + 16 * ((n + 1) % 3), SB + 16 * ((n + 2) % 3)
            e = lambda a, b: [k(f"v_exp_f32 v{cu+i}, v{cu+i}") for i in range(a, b)]
            if n < 63:
                t1, s1 = steps[n + 1]
                k(M32(nx, kreg(t1), Q + 8 * s1, "0"))
            emit(k, fill[n, 0]); e(0, 3)
            if n < 63: k(M32(nx, kreg(t1) + 4, Q + 8 * s1 + 4))
            emit(k, fill[n, 1]); e(3, 6)
            if n > 0:
                t0, s0 = steps[n - 1]
                k(SMF(O + 16 * s0, kreg(t0) + 12, pv + 8))
            emit(k, fill[n, 2]); e(6, 10)
            k(SMF(O + 16 * s, kreg(t) + 8, cu))
            emit(k, fill[n, 3]); e(10, 16)
        k.tag = "bepi"
        emit(k, mq)
        OW = O + 48
        k(SMF(OW, kreg(15) + 12, SB + 8))
        emit(k, self.stamp())
        k(f"s_lshl_b32 s4, s62, 15\ns_lshl_b32 s5, s6, 1\ns_add_u32 s5, s5, s{sP}\ns_lshl_b32 s5, s5, 10")
        k(f"s_add_u32 s{sKV}, s4, s5\ns_add_u32 s{sKV}, s{sKV}, {OG}")
        k(f"s_mov_b32 s4, {f32(2.0**-40)}\ns_mov_b32 s5, {f32(2.0**40)}")
        for i in (1, 0, 2, 3):
            k(f"WAIT lg=mr{i}")
            for j in (1, 2):
                for h in range(2):
                    r = O + 4 * i + 2 * h
                    k(f"v_pk_add_f32 {vr(r,2)}, {vr(r,2)}, {vr(r+16*j,2)}")
        for i in (3, 0, 1, 2, 4, 5, 6, 7):
            k(f"v_pk_add_f32 {vr(OW+2*i,2)}, {vr(OW+2*i,2)}, {vr(O+2*i,2)}")
            if i == 0:
                k(f"v_cmp_le_f32 vcc, s4, v{OW+7}")
                k(f"v_cmp_ge_f32 s[58:59], s5, v{OW+7}")
        k("s_and_b64 s[58:59], s[58:59], vcc")
        k("s_cmp_eq_u64 s[58:59], -1")
        k(f"s_cbranch_scc{1 if CFG['force_fallback'] else 0} {k.L('fb')}")
        k.label("norm")
        k(f"v_rcp_f32 v4, v{OW+7}")
        k("s_mov_b32 s4, 0xffff")
        for s in range(2):
            for i in range(4): k(f"v_pk_mul_f32 {vr(OW+8*s+2*i,2)}, {vr(OW+8*s+2*i,2)}, v[4:5] op_sel_hi:[1,0]")
            for i in range(4): k(f"v_cvt_pk_bf16_f32 v{48+4*s+i}, v{OW+8*s+2*i}, v{OW+8*s+2*i+1}")
            k(f"v_bfi_b32 v{48+4*s+3}, s4, v{48+4*s+3}, v{vN}")
            k(f"buffer_store_dwordx4 {vr(48+4*s,4)}, v{vOst}, {sr(SWS,4)}, s{sKV} offen offset:{512*s} sc1 ;#o")
        emit(k, self.stamp())
        self.left = [x for _, x in convq]; self.readable = readable
        t = []
        ld = lambda i: f"buffer_load_dwordx4 {vr(KVB+4*i,4)}, v{vL16}, {sr(SWS,4)}, s4 offen offset:{1024*i} sc1"
        QO = Q + 24
        t += [k.L("fb") + ":", "v_mov_b32 v6, 0xff800000", f"s_mov_b32 s4, s{sH}", "s_mov_b32 s5, 64", k.L("fb1") + ":", ld(0), ld(1),
              "s_add_u32 s4, s4, 4096", "s_sub_u32 s5, s5, 1", "WAIT vm=0", M32(SB, KVB, QO, "0"), M32(SB, KVB + 4, QO + 4)]
        t += [f"v_max3_f32 v6, v6, v{SB+i}, v{SB+i+1}" for i in range(0, 16, 2)]
        t += ["s_cmp_lg_u32 s5, 0", f"s_cbranch_scc1 {k.L('fb1')}", "v_mov_b32 v7, v6", "v_permlane32_swap_b32 v6, v7", "v_max_f32 v6, v6, v7"]
        t += [f"v_mov_b32 v{r}, 0" for r in range(OW, OW + 16)]
        t += [f"s_mov_b32 s4, s{sH}", "s_mov_b32 s5, 64", k.L("fb2") + ":"] + [ld(i) for i in range(4)]
        t += ["s_add_u32 s4, s4, 4096", "s_sub_u32 s5, s5, 1", "WAIT vm=0", M32(SB, KVB, QO, "0"), M32(SB, KVB + 4, QO + 4)]
        t += [f"v_sub_f32 v{SB+i}, v{SB+i}, v6" for i in range(16)] + [f"v_exp_f32 v{SB+i}, v{SB+i}" for i in range(16)]
        t += [SMF(OW, KVB + 8, SB), SMF(OW, KVB + 12, SB + 8), "s_nop 7", "s_cmp_lg_u32 s5, 0", f"s_cbranch_scc1 {k.L('fb2')}", f"s_branch {k.L('norm')}"]
        self.tail += t

    def finish(self):
        k = self.k
        k.tag = "fin"
        k.label("fin")
        k("s_or_b32 s4, s2, s3\ns_cmp_lg_u32 s4, 0")
        k(f"s_cbranch_scc1 {k.L('fin2')}")
        k(f"s_mov_b32 s4, {NONCE}")
        if CFG["upto"] >= 3: k(f"buffer_store_dword v{vN}, v{vF0}, {sr(SWS,4)}, s4 offen")
        k.label("fin2")
        if CFG["upto"] < 5: k("s_waitcnt vmcnt(0) lgkmcnt(0)")
        if CFG["stamps"]:
            k("s_waitcnt vmcnt(0)")
            emit(k, self.stamp())
            k("s_memtime s[98:99]")
            k("s_waitcnt lgkmcnt(0)")
            k(f"s_lshl_b32 s4, s2, 2\ns_add_u32 s4, s4, s3\ns_lshl_b32 s4, s4, 6\ns_add_u32 s4, s4, {TS}")
            for i in range(self.nst):
                k(f"v_mov_b32 v4, s{64+2*i}")
                k(f"buffer_store_dword v4, v{vF0}, {sr(SWS,4)}, s4 offen offset:{4*i}")
            k("s_sub_u32 s98, s98, s96\nv_mov_b32 v4, s98")
            k(f"buffer_store_dword v4, v{vF0}, {sr(SWS,4)}, s4 offen offset:60")
        k.label("exit")
        k("s_endpgm")
        k.tag = "tail"
        emit(k, self.tail)

def build(path, verbose=True, **cfg):
    CFG.update(cfg)
    import mega_cde
    g = Gen()
    g.phase_a()
    if CFG["upto"] >= 2: g.phase_b()
    if CFG["upto"] >= 3: mega_cde.phase_cde(g)
    g.finish()
    ref = open("sequential_preLN__softmax_full_mha__glu_gated_glu__prompt.s.ref").read().split("\n")
    print("stamps", g.nst)
    return write_file(path, [g.k], [g.k], "\n".join(ref[:11]), verbose, single=True)

if __name__ == "__main__":
    sys.modules["mega"] = sys.modules["__main__"]
    out = sys.argv[1] if len(sys.argv) > 1 else "m.s"
    cfg = {}
    for a in sys.argv[2:]:
        n, v = a.split("="); cfg[n] = float(v) if "." in v else int(v)
    ok = build(out, **cfg)
    print("OK" if ok else "CHECK FAILED")
```
